```python
import torch

def _softmax(x, axis=-1):
    return torch.softmax(x, dim=axis)
def _gelu(x):
    return torch.nn.functional.gelu(x, approximate="tanh")
def _silu(x):
    return torch.nn.functional.silu(x)
def _sigmoid(x):
    return torch.sigmoid(x)
def _layernorm(x, axis=-1, eps=1e-5):
    m = x.mean(dim=axis, keepdim=True)
    v = x.var(dim=axis, keepdim=True, unbiased=False)
    return (x - m) / torch.sqrt(v + eps)
def _scatter_add(tgt, idx, src, axis=0):
    return tgt.clone().index_add_(axis, idx, src)
def _segment_sum(src, seg, n):
    out = torch.zeros((n,) + src.shape[1:], dtype=src.dtype)
    return out.index_add_(0, seg, src)
def _pad(x, pw):
    flat = tuple(v for pair in reversed(pw) for v in pair)
    return torch.nn.functional.pad(x, flat)

kernel_name = 'parallel_sum__sliding_block__mixer_token_mlp__prompt'

def setup_inputs():

    _w = (lambda a: (lambda t: t.to(torch.bfloat16) if t.is_floating_point() else t)(torch.as_tensor(a)))
    def _A_setup():
        B, S, D = 1, 2048, 512
        return {
            "x": _w((lambda *s: torch.randn(*s, dtype=torch.bfloat16) * 0.05)(B, S, D)),
            "wqkv": _w((lambda *s: torch.randn(*s, dtype=torch.bfloat16) * 0.05)(D, 3 * D)),
            "wo": _w((lambda *s: torch.randn(*s, dtype=torch.bfloat16) * 0.05)(D, D)),
        }
    _A_in = _A_setup()

    def _B_setup():
        B, S, D, F = 1, 2048, 512, 1376
        return {
            "x": _w((lambda *s: torch.randn(*s, dtype=torch.bfloat16) * 0.05)(B, S, D)),
            "w1": _w((lambda *s: torch.randn(*s, dtype=torch.bfloat16) * 1.6)(S, F) * (S ** -0.5)),
            "b1": _w((lambda *s: torch.randn(*s, dtype=torch.bfloat16) * 12.8)(F) * 0.02),
            "w2": _w((lambda *s: torch.randn(*s, dtype=torch.bfloat16) * 0.4)(F, S) * (F ** -0.5)),
            "b2": _w((lambda *s: torch.randn(*s, dtype=torch.bfloat16) * 6.4)(S) * 0.02),
        }
    _B_in = _B_setup()

    return {
        "A_x": _A_in["x"],
        "A_wqkv": _A_in["wqkv"],
        "A_wo": _A_in["wo"],
        "B_x": _B_in["x"],
        "B_w1": _B_in["w1"],
        "B_b1": _B_in["b1"],
        "B_w2": _B_in["w2"],
        "B_b2": _B_in["b2"],
    }

def reference(A_x, A_wqkv, A_wo, B_x, B_w1, B_b1, B_w2, B_b2):
    def _A_ref(x, wqkv, wo):
        B, S, D = x.shape
        H = 32; Dh = D // H; W = 256
        qkv = (lambda x, *d: x.permute(*d))((x @ wqkv).reshape(B, S, 3, H, Dh), 2, 0, 3, 1, 4)
        q, k, v = qkv[0], qkv[1], qkv[2]
        scores = torch.einsum("bhqd,bhkd->bhqk", q, k) * (Dh ** -0.5)
        idx = torch.arange(S)
        mask = (idx[:, None] - idx[None, :] >= 0) & (idx[:, None] - idx[None, :] < W)
        scores = torch.where(mask[None, None], scores, -1e9)
        p = _softmax(scores, axis=-1)
        o = torch.einsum("bhqk,bhkd->bhqd", p, v)
        return (lambda x, *d: x.permute(*d))(o, 0, 2, 1, 3).reshape(B, S, D) @ wo

    def _B_ref(x, w1, b1, w2, b2):
        B, S, D = x.shape
        h = _layernorm(x, axis=-1)
        u = torch.einsum("bsd,sf->bdf", h, w1) + b1
        u = _gelu(u)
        y = torch.einsum("bdf,fs->bds", u, w2) + b2
        return (lambda x, *d: x.permute(*d))(y, 0, 2, 1)

    x = A_x
    xn = _layernorm(x, axis=-1)
    return x + _A_ref(xn, A_wqkv, A_wo) + _B_ref(xn, B_w1, B_b1, B_w2, B_b2)
```

```python
class Asm:
    def __init__(self):
        self.lines = []
        self.uid = 0
    def __call__(self, s):
        for l in s.strip("\n").split("\n"):
            self.lines.append("    " + l.strip() if not l.strip().endswith(":") else l.strip())
    def label(self, name):
        self.lines.append(name + ":")
    def newlabel(self, p="L"):
        self.uid += 1
        return "%s_%d" % (p, self.uid)
    def c(self, s):
        self.lines.append("    ; " + s)
    def text(self):
        return "\n".join(self.lines) + "\n"

def kernel_begin(a, name):
    a.lines.append(".text")
    a.lines.append(".globl %s" % name)
    a.lines.append(".p2align 8")
    a.lines.append(".type %s,@function" % name)
    a.lines.append("%s:" % name)

def kernel_desc(name, vgpr, sgpr=102, accum=None):
    if accum is None:
        accum = (vgpr + 3) // 4 * 4
        accum = min(accum, 256)
    return """.section .rodata,"a"
.p2align 6
.amdhsa_kernel %s
  .amdhsa_next_free_vgpr %d
  .amdhsa_next_free_sgpr %d
  .amdhsa_accum_offset %d
  .amdhsa_group_segment_fixed_size 0
  .amdhsa_kernarg_size 88
  .amdhsa_user_sgpr_count 2
  .amdhsa_user_sgpr_kernarg_segment_ptr 1
  .amdhsa_system_sgpr_workgroup_id_x 1
.end_amdhsa_kernel
""" % (name, vgpr, sgpr, accum)

def srd(a, d, b, nbytes):
    a("s_mov_b32 s%d, s%d" % (d, b))
    a("s_and_b32 s%d, s%d, 0xffff" % (d + 1, b + 1))
    a("s_mov_b32 s%d, 0x%x" % (d + 2, nbytes))
    a("s_mov_b32 s%d, 0x00020000" % (d + 3))
```

```python
import re, sys

def regs(tok):
    tok = tok.strip()
    tok = tok.lstrip("-")
    m = re.match(r"abs\((.*)\)", tok) or re.match(r"\|(.*)\|", tok)
    if m: tok = m.group(1)
    m = re.fullmatch(r"([vsa])(\d+)", tok)
    if m: return [(m.group(1), int(m.group(2)))]
    m = re.fullmatch(r"([vsa])\[(\d+):(\d+)\]", tok)
    if m: return [(m.group(1), i) for i in range(int(m.group(2)), int(m.group(3)) + 1)]
    if tok in ("vcc", "vcc_lo", "vcc_hi"): return [("vcc", 0)]
    if tok in ("exec", "exec_lo", "exec_hi"): return [("exec", 0)]
    if tok == "m0": return [("m0", 0)]
    return []

TRANS = ("v_exp_f32", "v_log_f32", "v_rcp_f32", "v_rsq_f32", "v_sqrt_f32", "v_sin_f32", "v_cos_f32")

class I:
    pass

def parse(line):
    s = line.split(";")[0].strip()
    if not s or s.startswith("."): return None
    if s.endswith(":"):
        i = I(); i.label = s[:-1]; i.op = None; i.text = s; return i
    parts = s.split(None, 1)
    op = parts[0]
    rest = parts[1] if len(parts) > 1 else ""
    ops = []; depth = 0; cur = ""
    for ch in rest:
        if ch in "[(": depth += 1
        if ch in "])": depth -= 1
        if ch == "," and depth == 0: ops.append(cur); cur = ""
        else: cur += ch
    ops.append(cur)
    mods = ""
    if ops:
        l = ops[-1].strip().split(None, 1)
        ops[-1] = l[0] if l else ""
        mods = l[1] if len(l) > 1 else ""
    i = I(); i.label = None; i.op = op; i.text = s; i.mods = mods; i.ops = [o.strip() for o in ops]
    i.dst = []; i.src = []; i.ws = 1
    base = re.sub(r"_(e32|e64|dpp|sdwa)$", "", op)
    i.base = base
    i.kind = "other"
    R = [regs(o) for o in i.ops]
    if op == "s_nop": i.ws = int(i.ops[0], 0) + 1; i.kind = "nop"
    elif op.startswith("v_mfma"):
        i.kind = "mfma"; i.dst = R[0]; i.srcA = R[1]; i.srcB = R[2]; i.srcC = R[3]; i.src = R[1] + R[2] + R[3]
        i.passes = 8 if "32x32" in op else 4
    elif op.startswith("v_"):
        i.kind = "valu"
        if base.startswith("v_cmpx"): i.dst = R[0] + [("exec", 0)]; i.src = sum(R[1:], [])
        elif base.startswith("v_permlane") and "swap" in base: i.dst = R[0] + R[1]; i.src = R[0] + R[1]
        elif base in ("v_add_co_u32", "v_sub_co_u32", "v_addc_co_u32", "v_subb_co_u32", "v_mad_u64_u32"): i.dst = R[0] + R[1]; i.src = sum(R[2:], [])
        else:
            i.dst = R[0]; i.src = sum(R[1:], [])
            if base in ("v_fmac_f32", "v_dot2c_f32_bf16", "v_pk_fmac_f16") or base == "v_writelane_b32": i.src += R[0]
        i.trans = base in TRANS
        i.dpp = op.endswith("_dpp") or "quad_perm" in mods or "row_" in mods
        i.dot = base.startswith("v_dot")
    elif op.startswith("buffer_") or op.startswith("global_"):
        i.kind = "vmem"
        lds = re.search(r"\blds\b", mods) is not None or "load_lds" in op
        i.lds = lds
        if "load" in op and not lds: i.dst = R[0]; i.src = sum(R[1:], [])
        else: i.src = sum(R, [])
        i.store = "store" in op or "atomic" in op
        if i.store:
            i.data = R[0] if op.startswith("buffer_") else R[1]
            i.wide = "x4" in op or "x3" in op
        if lds: i.src.append(("m0", 0))
    elif op.startswith("ds_"):
        i.kind = "ds"
        if "read" in op or "bpermute" in op or "swizzle" in op: i.dst = R[0]; i.src = sum(R[1:], [])
        else: i.src = sum(R, [])
    elif op.startswith("s_"):
        i.kind = "salu"
        if op.startswith("s_cmp") or op.startswith("s_cbranch") or op in ("s_branch", "s_waitcnt", "s_barrier", "s_endpgm", "s_setprio", "s_sleep"):
            i.src = sum(R, [])
        else:
            i.dst = R[0] if R else []; i.src = sum(R[1:], [])
            if "saveexec" in op: i.dst = i.dst + [("exec", 0)]
    return i

def need(p, c):
    n = 0
    pd = set(p.dst); cs = set(c.src); cd = set(c.dst)
    def ov(a, b): return bool(set(a) & set(b))
    if p.kind == "valu":
        vd = {r for r in pd if r[0] in "va" and len(r[0]) == 1}
        sd = {r for r in pd if r[0] in ("s", "vcc")}
        if c.kind == "mfma" and vd & cs: n = max(n, 2)
        if c.kind == "mfma" and ("exec", 0) in pd: n = max(n, 4)
        if c.kind == "valu":
            if p.trans and not c.trans and vd & cs: n = max(n, 1)
            if c.dpp and vd & cs: n = max(n, 2)
            if c.dpp and ("exec", 0) in pd: n = max(n, 5)
            if c.base.startswith("v_permlane") and vd & cs: n = max(n, 2)
            if c.base in ("v_readlane_b32", "v_readfirstlane_b32") and vd & cs: n = max(n, 1)
            if sd & cs: n = max(n, 2)
            if c.base == "v_cndmask_b32" and ("vcc", 0) in sd: n = max(n, 2)
            if c.base in ("v_readlane_b32", "v_writelane_b32") and sd & cs: n = max(n, 4)
            if p.dot and vd & (cs | cd):
                if c.base == p.base and len(c.ops) > 3 and not (vd & set(regs(c.ops[1]) + regs(c.ops[2]))): pass
                else: n = max(n, 3)
            if "op_sel" in p.mods and not p.base.startswith("v_pk") and vd & cs: n = max(n, 1)
            if "sdwa" in p.op and vd & cs: n = max(n, 1)
        if p.dot and c.kind in ("vmem", "ds", "mfma") and vd & cs: n = max(n, 3)
        if c.kind == "vmem" and sd & cs: n = max(n, 5)
        if c.kind == "salu" and sd & cs: n = max(n, 1)
    if p.kind == "mfma":
        P = p.passes
        t_rw = {4: 8, 8: 12}[P]
        if c.kind == "mfma":
            if ov(pd, c.srcA) or ov(pd, c.srcB): n = max(n, t_rw)
            if ov(pd, c.srcC):
                if c.srcC == p.dst and c.passes == P: pass
                else: n = max(n, {4: 6, 8: 10}[P])
        elif c.kind in ("valu", "vmem", "ds"):
            if pd & (cs | cd): n = max(n, t_rw)
            if c.kind == "valu" and ov(p.srcC, cd): n = max(n, {4: 3, 8: 7}[P])
    if p.kind == "salu" and ("m0", 0) in pd and c.kind == "vmem" and c.lds: n = max(n, 1)
    if p.kind == "vmem" and getattr(p, "store", False) and p.wide and ov(p.data, cd):
        n = max(n, 2 if c.kind in ("valu", "mfma") else 1)
    return n

def check(text, maxd=14):
    ins = [x for x in (parse(l) for l in text.split("\n")) if x is not None]
    labels = {x.label: k for k, x in enumerate(ins) if x.label}
    errs = []
    N = len(ins)
    def succ(k):
        x = ins[k]
        if x.op is None: return [k + 1] if k + 1 < N else []
        if x.op == "s_endpgm": return []
        if x.op == "s_branch": return [labels[x.ops[0]]]
        if x.op.startswith("s_cbranch"): return [k + 1, labels[x.ops[0]]]
        return [k + 1] if k + 1 < N else []
    for k, p in enumerate(ins):
        if p.op is None or p.kind in ("nop", "other", "ds"): continue
        stack = [(s, 0) for s in succ(k)]
        seen = {}
        while stack:
            j, d = stack.pop()
            if j >= N or d > maxd: continue
            if j in seen and seen[j] <= d: continue
            seen[j] = d
            c = ins[j]
            if c.op is not None:
                n = need(p, c)
                if n > d: errs.append("HAZARD need %d have %d:\n    %s\n    %s" % (n, d, p.text, c.text))
                nd = d + c.ws
            else: nd = d
            for s in succ(j): stack.append((s, nd))
    return errs

if __name__ == "__main__":
    e = check(open(sys.argv[1]).read())
    for x in e: print(x)
    print("%d hazards" % len(e))
```

```python
import sys, math, struct
from asmlib import *
import hazard

KN = "parallel_sum__sliding_block__mixer_token_mlp__prompt"
WS_QF, WS_KF, WS_VF, WS_H, WS_UF, WS_OF = 0x000000, 0x200000, 0x400000, 0x600000, 0x800000, 0xA00000
WS_USED = 0xC00000
TS_OFF = 0x8000000
OOB = 0x40000000
def f32(x): return "0x%08x" % struct.unpack("<I", struct.pack("<f", x))[0]
LOG2E = 1.4426950408889634
EPS = 1e-5

class Cfg:
    prof = False

def vr(b, n): return "v[%d:%d]" % (b, b + n - 1)
def sr(b, n): return "s[%d:%d]" % (b, b + n - 1)

def interleave(a, main, fill):
    n = len(main); k = 0
    for i, m in enumerate(main):
        a(m)
        upto = (len(fill) * (i + 1)) // n
        while k < upto:
            a(fill[k]); k += 1

def prof_begin(a):
    if Cfg.prof:
        a("s_memrealtime s[90:91]")
def prof_mid(a, idx):
    if Cfg.prof:
        a("s_memrealtime s[%d:%d]" % (92 + 2 * idx, 93 + 2 * idx))
def prof_end(a, kidx, swave, nw=4):
    if not Cfg.prof: return
    a("s_waitcnt vmcnt(0)")
    a("s_memrealtime s[96:97]")
    a("s_load_dwordx2 s[88:89], s[0:1], 80")
    a("s_waitcnt lgkmcnt(0)")
    srd(a, 84, 88, 0x10000000)
    for i in range(8): a("v_mov_b32 v%d, s%d" % (2 + i, 90 + i))
    a("s_mul_i32 s83, s2, %d" % nw)
    a("s_add_u32 s83, s83, s%d" % swave)
    a("s_lshl_b32 s83, s83, 5")
    a("s_add_u32 s83, s83, 0x%x" % (TS_OFF + kidx * 0x100000))
    a("v_mov_b32 v1, 0")
    a("s_mov_b64 exec, 1")
    a("buffer_store_dwordx4 v[2:5], v1, s[84:87], s83 offen")
    a("buffer_store_dwordx4 v[6:9], v1, s[84:87], s83 offen offset:16")

def k1(a):
    NS, D, N = 4, 3, 8
    kernel_begin(a, "k1_kernel")
    a("s_cmp_ge_u32 s2, 256")
    a("s_cbranch_scc1 K1_end")
    prof_begin(a)
    a("s_load_dwordx4 s[4:7], s[0:1], 0      ; x, wqkv")
    a("s_load_dwordx2 s[8:9], s[0:1], 80     ; ws")
    a("v_and_b32 v1, 63, v0                  ; lane")
    a("v_lshrrev_b32 v2, 6, v0")
    a("s_and_b32 s25, s2, 7")
    a("s_lshr_b32 s26, s2, 3                 ; idx")
    a("v_readfirstlane_b32 s24, v2           ; wave")
    a("s_mov_b32 s40, 0x3f803f80             ; bf16 (1.0, 1.0)")
    a("s_waitcnt lgkmcnt(0)")
    srd(a, 12, 4, 2048 * 1024)
    srd(a, 16, 6, 512 * 3072)
    srd(a, 20, 8, WS_USED)
    a("s_cmp_ge_u32 s26, 24")
    a("s_cbranch_scc1 K1_helper")
    a("s_and_b32 s27, s26, 7                 ; rb")
    a("s_lshr_b32 s28, s26, 3                ; kind 0=Q 1=K 2=V")
    a("s_lshr_b32 s29, s25, 2")
    a("s_and_b32 s30, s25, 3")
    a("s_lshl_b32 s31, s29, 3")
    a("s_add_u32 s31, s31, s27               ; r0/128")
    a("s_lshl_b32 s32, s31, 17               ; r0*1024")
    a("s_lshl_b32 s33, s24, 15               ; 32*w*1024")
    a("s_add_u32 s32, s32, s33               ; sXbase")
    a("s_lshl_b32 s33, s28, 10               ; kind*512*2")
    a("s_lshl_b32 s34, s30, 8                ; hg*128*2")
    a("s_add_u32 s33, s33, s34")
    a("s_mul_i32 s34, s24, %d" % (16 * 3072))
    a("s_add_u32 s33, s33, s34               ; sWbase")
    a("s_mul_i32 s34, s28, 3")
    a("s_add_u32 s34, s34, s27")
    a("s_lshl_b32 s35, s24, 12")
    a("s_mov_b32 s36, 0")
    a("v_lshrrev_b32 v2, 3, v1               ; l>>3")
    a("v_lshrrev_b32 v3, 4, v1               ; l>>4")
    a("v_and_b32 v12, 7, v1")
    a("v_xor_b32 v12, v12, v3                ; (l&7)^(l>>4)")
    a("v_lshlrev_b32 v12, 4, v12")
    a("v_lshl_add_u32 v4, v2, 10, v12")
    a("v_xor_b32 v5, 64, v4")
    a("v_add_u32 v5, %d, v5" % (1 * 7168))
    a("v_add_u32 v6, %d, v4" % (2 * 7168))
    a("v_add_u32 v7, %d, v5" % (2 * 7168))
    a("v_and_b32 v12, 15, v1")
    a("v_lshlrev_b32 v13, 2, v3")
    a("v_xor_b32 v12, v12, v13               ; (l&15)^((l>>4)<<2)")
    a("v_lshlrev_b32 v12, 4, v12")
    a("v_mul_u32_u24 v13, 3072, v3")
    a("v_add_u32 v8, v12, v13")
    for i in range(1, 4): a("v_add_u32 v%d, %d, v8" % (8 + i, i * (4 * 3072 - 1024)))
    def issue():
        L = []
        L.append("s_and_b32 s37, s34, 7")
        L.append("s_lshl_b32 s38, s37, 7")
        L.append("s_add_u32 s38, s38, s32")
        L.append("s_mul_i32 s39, s37, %d" % (64 * 3072))
        L.append("s_add_u32 s39, s39, s33")
        L.append("s_cmp_lt_u32 s36, %d" % N)
        L.append("s_cselect_b32 s38, s38, 0x%x" % OOB)
        L.append("s_cselect_b32 s39, s39, 0x%x" % OOB)
        L.append("s_mov_b32 m0, s35")
        L.append("s_add_u32 s34, s34, 1")
        for i in range(4): L.append("buffer_load_dwordx4 v%d, s[12:15], s38 offen offset:%d lds" % (4 + i, 1024 * i))
        L.append("s_add_u32 m0, s35, 16384")
        L.append("s_add_u32 s36, s36, 1")
        for i in range(4): L.append("buffer_load_dwordx4 v%d, s[16:19], s39 offen offset:%d lds" % (8 + i, 1024 * i))
        L.append("s_add_u32 s35, s35, 32768")
        L.append("s_and_b32 s35, s35, 0x1ffff")
        return L
    for d in range(D):
        for x in issue(): a(x)
    a("s_and_b32 s41, s24, 1                 ; wx")
    a("s_lshr_b32 s42, s24, 1                ; ww")
    a("s_lshl_b32 s43, s41, 1")
    a("s_add_u32 s43, s43, s42")
    a("s_xor_b32 s44, s43, 1                 ; xb1")
    a("s_lshl_b32 s45, s42, 1")
    a("s_add_u32 s45, s45, s41")
    a("s_xor_b32 s46, s45, 1                 ; q1")
    a("v_and_b32 v2, 31, v1                  ; l&31")
    a("v_lshrrev_b32 v3, 5, v1               ; half")
    a("v_lshrrev_b32 v12, 1, v2")
    a("v_and_b32 v12, 7, v12")
    a("v_xor_b32 v12, v12, v3")
    a("v_lshlrev_b32 v12, 4, v12")
    a("v_lshl_add_u32 v12, v2, 7, v12")
    a("s_lshl_b32 s47, s43, 12")
    a("v_add_u32 v16, s47, v12")
    for ks in range(1, 4): a("v_xor_b32 v%d, %d, v16" % (16 + ks, ks << 5))
    for ks in range(4): a("v_xor_b32 v%d, 0x1000, v%d" % (20 + ks, 16 + ks))
    a("v_bfe_u32 v12, v1, 2, 2               ; r")
    a("v_lshl_add_u32 v13, v3, 3, v12        ; 8half + r")
    a("v_lshlrev_b32 v13, 8, v13")
    a("v_xor_b32 v12, s45, v12               ; q0 ^ r")
    a("v_lshl_add_u32 v13, v12, 6, v13")
    a("v_bfe_u32 v12, v1, 4, 1")
    a("v_lshl_add_u32 v13, v12, 5, v13")
    a("v_and_b32 v12, 3, v1")
    a("v_lshl_add_u32 v13, v12, 3, v13")
    a("v_add_u32 v24, 16384, v13")
    a("v_xor_b32 v25, 64, v24")
    ACC = 64
    SET = [32, 48]
    SUM, SQ, CS = 26, 27, 28
    for i in range(64): a("v_mov_b32 v%d, 0" % (ACC + i))
    for i in range(16): a("v_mov_b32 v%d, 0" % (SET[1] + i))
    for r in (SUM, SQ, CS): a("v_mov_b32 v%d, 0" % r)
    a("s_mov_b32 s48, 0                      ; t")
    a("s_mov_b32 s49, 0")
    a("s_cmp_eq_u32 s28, 2")
    a("s_cbranch_scc1 K1_loopV")
    def reads(s, ks):
        b = SET[s]
        L = ["ds_read_b128 %s, v%d" % (vr(b, 4), 16 + ks),
             "ds_read_b64_tr_b16 %s, v24 offset:%d" % (vr(b + 8, 2), (16 * ks) * 256),
             "ds_read_b64_tr_b16 %s, v24 offset:%d" % (vr(b + 10, 2), (16 * ks + 4) * 256),
             "ds_read_b128 %s, v%d" % (vr(b + 4, 4), 20 + ks),
             "ds_read_b64_tr_b16 %s, v25 offset:%d" % (vr(b + 12, 2), (16 * ks) * 256),
             "ds_read_b64_tr_b16 %s, v25 offset:%d" % (vr(b + 14, 2), (16 * ks + 4) * 256)]
        return L
    def mf(s, isV):
        b = SET[s]; L = []
        for bw, bx in ((0, 0), (0, 1), (1, 0), (1, 1)):
            acc = vr(ACC + (bw * 2 + bx) * 16, 16)
            X = vr(b + 4 * bx, 4); W = vr(b + 8 + 4 * bw, 4)
            A, B = (X, W) if isV else (W, X)
            L.append("v_mfma_f32_32x32x16_bf16 %s, %s, %s, %s" % (acc, A, B, acc))
        return L
    def dots(s):
        b = SET[s]; L = []
        for i in range(4):
            L.append("v_dot2_f32_bf16 v%d, v%d, s40, v%d" % (SUM, b + i, SUM))
            L.append("v_dot2_f32_bf16 v%d, v%d, v%d, v%d" % (SQ, b + i, b + i, SQ))
            L.append("v_dot2_f32_bf16 v%d, v%d, s40, v%d" % (CS, b + 8 + i, CS))
        return L
    def merge(x, y):
        out = []; nx, ny = len(x), len(y); j = 0
        for i, e in enumerate(x):
            out.append(e)
            upto = ny * (i + 1) // nx
            while j < upto: out.append(y[j]); j += 1
        return out
    for isV in (False, True):
        tag = "V" if isV else "QK"
        a.label("K1_loop" + tag)
        a("s_waitcnt vmcnt(%d) lgkmcnt(0)" % (8 * (D - 1)))
        a("s_barrier")
        for x in reads(0, 0): a(x)
        iss = issue()
        interleave(a, mf(1, isV), merge(dots(1), iss[:14]))
        for x in reads(1, 1): a(x)
        a("s_waitcnt lgkmcnt(6)")
        interleave(a, mf(0, isV), merge(dots(0), iss[14:]))
        for x in reads(0, 2): a(x)
        a("s_waitcnt lgkmcnt(6)")
        interleave(a, mf(1, isV), dots(1))
        for x in reads(1, 3): a(x)
        a("s_waitcnt lgkmcnt(6)")
        upd = ["s_add_u32 s50, s49, 32768", "s_and_b32 s50, s50, 0x1ffff", "s_sub_u32 s51, s50, s49", "s_mov_b32 s49, s50"]
        upd += ["v_add_u32 v%d, s51, v%d" % (r, r) for r in range(16, 26)]
        upd += ["s_add_u32 s48, s48, 1", "s_cmp_lt_u32 s48, %d" % N]
        interleave(a, mf(0, isV), merge(dots(0), upd))
        a("s_cbranch_scc1 K1_loop" + tag)
        a("s_waitcnt lgkmcnt(0)")
        interleave(a, mf(1, isV), dots(1))
        if not isV: a("s_branch K1_stats")
    a.label("K1_stats")
    prof_mid(a, 0)
    ST = 131072
    a("s_nop 2")
    for r, t in ((SUM, 29), (SQ, 30), (CS, 31)): a("v_mov_b32 v%d, v%d" % (t, r))
    a("s_nop 1")
    for r, t in ((SUM, 29), (SQ, 30), (CS, 31)): a("v_permlane32_swap_b32 v%d, v%d" % (r, t))
    a("s_nop 1")
    for r, t in ((SUM, 29), (SQ, 30), (CS, 31)): a("v_add_f32 v%d, v%d, v%d" % (r, r, t))
    a("v_mul_f32 v%d, %s, v%d      ; mean" % (SUM, f32(1.0 / 512), SUM))
    a("v_mul_f32 v29, v%d, v%d" % (SUM, SUM))
    a("s_mov_b32 s52, %s" % f32(1.0 / 512))
    a("v_fma_f32 v%d, v%d, s52, -v29      ; var" % (SQ, SQ))
    a("v_max_f32 v%d, 0, v%d" % (SQ, SQ))
    a("v_add_f32 v%d, %s, v%d" % (SQ, f32(EPS), SQ))
    a("v_rsq_f32 v%d, v%d" % (SQ, SQ))
    a("s_cmp_eq_u32 s28, 0")
    a("s_cselect_b32 s52, %s, 1.0          ; Q carries Dh^-0.5 * log2(e)" % f32(0.25 * LOG2E))
    a("v_mul_f32 v%d, s52, v%d             ; rs" % (SQ, SQ))
    a("v_lshlrev_b32 v12, 2, v2               ; (l&31)*4")
    a("s_lshl_b32 s53, s43, 7")
    a("s_add_u32 s53, s53, %d" % ST)
    a("v_add_u32 v13, s53, v12")
    a("ds_write_b32 v13, v%d" % SUM)
    a("ds_write_b32 v13, v%d offset:512" % SQ)
    a("s_lshl_b32 s53, s45, 7")
    a("s_add_u32 s53, s53, %d" % (ST + 1024))
    a("v_add_u32 v14, s53, v12")
    a("ds_write_b32 v14, v%d" % CS)
    a("s_lshl_b32 s54, s28, 21")
    a("s_lshl_b32 s55, s30, 19")
    a("s_add_u32 s54, s54, s55")
    a("s_lshl_b32 s55, s31, 12")
    a("s_add_u32 s54, s54, s55")
    a("s_waitcnt lgkmcnt(0)")
    a("s_barrier")
    a("s_cmp_eq_u32 s28, 2")
    a("s_cbranch_scc1 K1_epiV")
    xb = [43, 44]; qq = [45, 46]
    def tile_soff(bw, bx):
        a("s_lshl_b32 s56, s%d, 17" % qq[bw])
        a("s_lshl_b32 s57, s%d, 10" % xb[bx])
        a("s_add_u32 s56, s56, s57")
        a("s_add_u32 s56, s56, s54")
    a("v_xor_b32 v13, 128, v13")
    a("ds_read_b32 v29, v13")
    a("ds_read_b32 v30, v13 offset:512")
    a("v_lshlrev_b32 v15, 4, v3              ; half*16")
    for bw in range(2):
        a("s_lshl_b32 s53, s%d, 7" % qq[bw])
        a("s_add_u32 s53, s53, %d" % (ST + 1024))
        a("v_add_u32 v14, s53, v15")
        for g in range(4): a("ds_read_b128 %s, v14 offset:%d" % (vr(32 + bw * 16 + 4 * g, 4), g * 32))
    a("v_lshlrev_b32 v12, 4, v1              ; lane*16")
    a("s_waitcnt lgkmcnt(0)")
    mean = [SUM, 29]; rs = [SQ, 30]
    a("v_mov_b32 v16, v%d" % SUM); a("v_mov_b32 v18, v%d" % SQ); a("v_mov_b32 v20, v29"); a("v_mov_b32 v22, v30")
    pm = [16, 20]; pr = [18, 22]
    for bw in range(2):
        for bx in range(2):
            A = ACC + (bw * 2 + bx) * 16
            tile_soff(bw, bx)
            for i in range(0, 16, 2):
                a("v_pk_fma_f32 %s, %s, %s, %s op_sel_hi:[0,1,1] neg_lo:[1,0,0] neg_hi:[1,0,0]" % (vr(A + i, 2), vr(pm[bx], 2), vr(32 + bw * 16 + i, 2), vr(A + i, 2)))
            for i in range(0, 16, 2):
                a("v_pk_mul_f32 %s, %s, %s op_sel_hi:[0,1]" % (vr(A + i, 2), vr(pr[bx], 2), vr(A + i, 2)))
            for i in range(8):
                a("v_cvt_pk_bf16_f32 v%d, v%d, v%d" % (A + i, A + 2 * i, A + 2 * i + 1))
            a("s_add_u32 s57, s56, 65536")
            a("buffer_store_dwordx4 %s, v12, s[20:23], s56 offen" % vr(A, 4))
            a("buffer_store_dwordx4 %s, v12, s[20:23], s57 offen" % vr(A + 4, 4))
    a("s_branch K1_done")
    a.label("K1_epiV")
    a("v_xor_b32 v14, 128, v14")
    a("ds_read_b32 v29, v14")
    a("v_lshlrev_b32 v15, 4, v3              ; half*16")
    a("v_bfe_u32 v12, v1, 4, 1")
    a("v_lshlrev_b32 v12, 16, v12")
    a("v_lshl_add_u32 v12, v3, 8, v12")
    a("v_and_b32 v13, 15, v1")
    a("v_lshl_add_u32 v12, v13, 4, v12")
    a("v_mov_b32 v16, v%d" % CS)
    for bx in range(2):
        a("s_lshl_b32 s53, s%d, 7" % xb[bx])
        a("s_add_u32 s53, s53, %d" % ST)
        a("v_add_u32 v14, s53, v15")
        for g in range(4): a("ds_read_b128 %s, v14 offset:%d" % (vr(32 + 4 * g, 4), g * 32))
        for g in range(4): a("ds_read_b128 %s, v14 offset:%d" % (vr(48 + 4 * g, 4), 512 + g * 32))
        a("s_waitcnt lgkmcnt(0)")
        if bx == 0: a("v_mov_b32 v18, v29")
        pc = [16, 18]
        for bw in range(2):
            A = ACC + (bw * 2 + bx) * 16
            tile_soff(bw, bx)
            for i in range(0, 16, 2):
                a("v_pk_fma_f32 %s, %s, %s, %s op_sel_hi:[0,1,1] neg_lo:[1,0,0] neg_hi:[1,0,0]" % (vr(A + i, 2), vr(pc[bw], 2), vr(32 + i, 2), vr(A + i, 2)))
            for i in range(0, 16, 2):
                a("v_pk_mul_f32 %s, %s, %s" % (vr(A + i, 2), vr(48 + i, 2), vr(A + i, 2)))
            for i in range(8):
                a("v_cvt_pk_bf16_f32 v%d, v%d, v%d" % (A + i, A + 2 * i, A + 2 * i + 1))
            a("buffer_store_dwordx4 %s, v12, s[20:23], s56 offen" % vr(A, 4))
            a("buffer_store_dwordx4 %s, v12, s[20:23], s56 offen offset:512" % vr(A + 4, 4))
    a("s_branch K1_done")
    a.label("K1_helper")
    a("s_sub_u32 s27, s26, 24")
    a("s_lshl_b32 s27, s27, 3")
    a("s_add_u32 s27, s27, s25               ; hidx 0..63")
    a("s_lshl_b32 s27, s27, 15               ; *32 rows*1024")
    a("s_lshl_b32 s28, s24, 13               ; w*8 rows")
    a("s_add_u32 s27, s27, s28")
    a("s_add_u32 s28, s27, 4096")
    a("v_lshrrev_b32 v2, 4, v1")
    a("v_and_b32 v3, 15, v1")
    a("v_lshlrev_b32 v3, 4, v3")
    a("v_lshl_add_u32 v2, v2, 10, v3")
    for g in range(2):
        for j in range(4):
            a("buffer_load_dwordx4 %s, v2, s[12:15], s%d offen offset:%d" % (vr(16 + g * 16 + j * 4, 4), 27 + g, j * 256))
    a("s_add_u32 s27, s27, 0x%x" % WS_H)
    a("s_add_u32 s28, s28, 0x%x" % WS_H)
    a("s_mov_b32 s52, %s" % f32(1.0 / 512))
    a("s_mov_b32 s53, 0xffff0000")
    for g in range(2):
        X = 16 + g * 16
        a("v_mov_b32 v4, 0"); a("v_mov_b32 v5, 0")
        a("s_waitcnt vmcnt(%d)" % (4))
        for i in range(16):
            a("v_dot2_f32_bf16 v4, v%d, s40, v4" % (X + i))
            a("v_dot2_f32_bf16 v5, v%d, v%d, v5" % (X + i, X + i))
        a("s_nop 2")
        for n in (8, 4, 2, 1):
            a("v_add_f32_dpp v4, v4, v4 row_ror:%d row_mask:0xf bank_mask:0xf" % n)
            a("v_add_f32_dpp v5, v5, v5 row_ror:%d row_mask:0xf bank_mask:0xf" % n)
            a("s_nop 0")
        a("v_mul_f32 v4, s52, v4                ; mean")
        a("v_mul_f32 v6, v4, v4")
        a("v_fma_f32 v5, v5, s52, -v6           ; var")
        a("v_max_f32 v5, 0, v5")
        a("v_add_f32 v6, %s, v5" % f32(EPS))
        a("v_rsq_f32 v6, v6")
        a("s_nop 0")
        a("v_mul_f32 v7, v6, v6")
        a("v_mul_f32 v7, v7, v5")
        a("v_add_f32 v7, %s, v7" % f32(EPS))
        a("v_rsq_f32 v7, v7                     ; r2")
        a("s_nop 0")
        a("v_mul_f32 v6, v6, v7                 ; a = r1*r2")
        a("v_mul_f32 v8, v4, v6")
        a("v_sub_f32 v8, 0, v8                  ; c = -mean*a")
        for i in range(16):
            t = 10 + 2 * (i & 1)
            a("v_lshlrev_b32 v%d, 16, v%d" % (t, X + i))
            a("v_and_b32 v%d, s53, v%d" % (t + 1, X + i))
            a("v_pk_fma_f32 %s, %s, v[6:7], v[8:9] op_sel_hi:[1,0,0]" % (vr(t, 2), vr(t, 2)))
            a("v_cvt_pk_bf16_f32 v%d, v%d, v%d" % (X + i, t, t + 1))
        for j in range(4):
            a("buffer_store_dwordx4 %s, v2, s[20:23], s%d offen offset:%d" % (vr(X + j * 4, 4), 27 + g, j * 256))
    a.label("K1_done")
    prof_end(a, 0, 24)
    a("s_waitcnt vmcnt(0)")
    a.label("K1_end")
    a("s_endpgm")
    return kernel_desc("k1_kernel", 128), 131072 + 1536

def t_image_voff(a, dst, stride_s_or_imm, tmp, lane=1):
    a("v_lshrrev_b32 v%d, 3, v%d" % (tmp, lane))
    a("v_bfe_u32 v%d, v%d, 4, 1" % (tmp + 1, lane))
    a("v_lshlrev_b32 v%d, 2, v%d" % (tmp + 1, tmp + 1))
    a("v_and_b32 v%d, 7, v%d" % (dst, lane))
    a("v_xor_b32 v%d, v%d, v%d" % (tmp + 1, tmp + 1, dst))
    a("v_lshlrev_b32 v%d, 4, v%d" % (tmp + 1, tmp + 1))
    a("v_mul_u32_u24 v%d, %d, v%d" % (dst, stride_s_or_imm, tmp))
    a("v_add_u32 v%d, v%d, v%d" % (dst, dst, tmp + 1))

def tr_base(a, dst, tmp, lane=1):
    a("v_lshrrev_b32 v%d, 5, v%d            ; half" % (dst, lane))
    a("v_bfe_u32 v%d, v%d, 2, 2             ; r" % (tmp, lane))
    a("v_lshl_add_u32 v%d, v%d, 2, v%d" % (dst, dst, tmp))
    a("v_lshlrev_b32 v%d, 7, v%d            ; (4half+r)*128" % (dst, dst))
    a("v_bfe_u32 v%d, v%d, 3, 1             ; r>>1" % (tmp, lane))
    a("v_lshl_add_u32 v%d, v%d, 6, v%d" % (dst, tmp, dst))
    a("v_bfe_u32 v%d, v%d, 4, 1             ; g&1" % (tmp, lane))
    a("v_lshl_add_u32 v%d, v%d, 5, v%d" % (dst, tmp, dst))
    a("v_and_b32 v%d, 3, v%d                ; cq" % (tmp, lane))
    a("v_lshl_add_u32 v%d, v%d, 3, v%d" % (dst, tmp, dst))

def rd_T(dst, addr, ks): return ["ds_read_b64_tr_b16 %s, v%d offset:%d" % (vr(dst + 2 * j, 2), addr, (16 * ks + 8 * j) * 128) for j in range(2)]
def rd_F(dst, addr, ks): return ["ds_read_b128 %s, v%d offset:%d" % (vr(dst, 4), addr, ks * 1024)]

def k2(a):
    NS, D, N = 4, 3, 32
    kernel_begin(a, "k2_kernel")
    a("s_cmp_ge_u32 s2, 688")
    a("s_cbranch_scc1 K2_end")
    prof_begin(a)
    a("s_load_dwordx4 s[4:7], s[0:1], 32     ; w1, b1")
    a("s_load_dwordx2 s[8:9], s[0:1], 80     ; ws")
    a("v_and_b32 v1, 63, v0                  ; lane")
    a("v_lshrrev_b32 v2, 6, v0")
    a("s_and_b32 s25, s2, 7")
    a("s_lshr_b32 s26, s2, 3                 ; j")
    a("v_readfirstlane_b32 s24, v2           ; wave")
    a("s_waitcnt lgkmcnt(0)")
    srd(a, 20, 8, WS_USED)
    a("s_cmp_ge_u32 s26, 22")
    a("s_cbranch_scc1 K2_attn")
    srd(a, 12, 4, 2048 * 2752)
    srd(a, 16, 6, 2752)
    a("s_lshr_b32 s27, s25, 1                ; fg")
    a("s_mul_i32 s27, s27, 22")
    a("s_add_u32 s27, s27, s26               ; t 0..87")
    a("s_lshr_b32 s28, s27, 2                ; f tile")
    a("s_and_b32 s29, s27, 3                 ; dl")
    a("s_and_b32 s30, s25, 1")
    a("s_lshl_b32 s30, s30, 2")
    a("s_add_u32 s30, s30, s29               ; d tile")
    a("s_lshr_b32 s41, s24, 1                ; wm")
    a("s_and_b32 s42, s24, 1                 ; wn")
    a("v_lshrrev_b32 v3, 5, v1")
    a("v_lshlrev_b32 v3, 3, v3               ; half*8")
    a("s_lshl_b32 s31, s28, 7")
    a("s_lshl_b32 s32, s41, 6")
    a("s_add_u32 s31, s31, s32")
    for g in range(4): a("buffer_load_dwordx2 %s, v3, s[16:19], s31 offen offset:%d" % (vr(8 + 2 * g, 2), g * 16))
    t_image_voff(a, 4, 2752, 16)
    a("v_add_u32 v5, %d, v4" % (8 * 2752 - 1024))
    a("v_lshl_add_u32 v6, v16, 10, v17")
    a("v_add_u32 v7, %d, v6" % (8192 - 1024))
    a("s_mul_i32 s32, s24, %d" % (16 * 2752))
    a("s_lshl_b32 s33, s28, 7")
    a("s_add_u32 s32, s32, s33               ; w1 base")
    a("s_lshl_b32 s33, s24, 14")
    a("s_lshl_b32 s34, s30, 7")
    a("s_add_u32 s33, s33, s34")
    a("s_add_u32 s33, s33, 0x%x              ; h base" % WS_H)
    a("s_lshl_b32 s34, s29, 3")
    a("s_mul_i32 s35, s28, 6")
    a("s_add_u32 s34, s34, s35               ; phase")
    a("s_lshl_b32 s35, s24, 11               ; m0 base")
    a("s_mov_b32 s36, 0                      ; n")
    def issue():
        L = ["s_and_b32 s37, s34, 31",
             "s_mul_i32 s38, s37, %d" % (64 * 2752),
             "s_add_u32 s38, s38, s32",
             "s_lshl_b32 s39, s37, 16",
             "s_add_u32 s39, s39, s33",
             "s_cmp_lt_u32 s36, %d" % N,
             "s_cselect_b32 s38, s38, 0x%x" % OOB,
             "s_cselect_b32 s39, s39, 0x%x" % OOB,
             "s_mov_b32 m0, s35",
             "s_add_u32 s34, s34, 1",
             "buffer_load_dwordx4 v4, s[12:15], s38 offen lds",
             "buffer_load_dwordx4 v5, s[12:15], s38 offen offset:1024 lds",
             "s_add_u32 m0, s35, 8192",
             "s_add_u32 s36, s36, 1",
             "buffer_load_dwordx4 v6, s[20:23], s39 offen lds",
             "buffer_load_dwordx4 v7, s[20:23], s39 offen offset:1024 lds",
             "s_add_u32 s35, s35, 16384",
             "s_and_b32 s35, s35, 0xffff"]
        return L
    for d in range(D):
        for x in issue(): a(x)
    tr_base(a, 18, 16)
    a("s_lshl_b32 s43, s41, 6")
    a("s_lshl_b32 s44, s42, 6")
    a("s_add_u32 s44, s44, 8192")
    a("v_xor_b32 v19, s44, v18               ; B addr")
    a("v_xor_b32 v18, s43, v18               ; A addr")
    ACC = 32; SET = [48, 80]
    for i in range(32): a("v_mov_b32 v%d, 0" % (SET[1] + i))
    a("s_waitcnt vmcnt(%d)" % (4 * D))
    for g in range(4):
        for i in range(2):
            a("v_lshlrev_b32 v%d, 16, v%d" % (ACC + 4 * g + 2 * i, 8 + 2 * g + i))
            a("v_and_b32 v%d, 0xffff0000, v%d" % (ACC + 4 * g + 2 * i + 1, 8 + 2 * g + i))
    a("s_mov_b32 s48, 0")
    def mf(s): return ["v_mfma_f32_32x32x16_bf16 %s, %s, %s, %s" % (vr(ACC, 16), vr(SET[s] + 8 * ks, 4), vr(SET[s] + 8 * ks + 4, 4), vr(ACC, 16)) for ks in range(4)]
    a.label("K2_loop")
    for s in range(2):
        a("s_waitcnt vmcnt(%d) lgkmcnt(0)" % (4 * (D - 1)))
        a("s_barrier")
        R = []
        for ks in range(4):
            R += rd_T(SET[s] + 8 * ks, 18, ks) + rd_T(SET[s] + 8 * ks + 4, 19, ks)
        m = mf(1 - s)
        fill = R + ["v_add_u32 v18, 0x4000, v18", "v_add_u32 v19, 0x4000, v19", "v_and_b32 v18, 0xffff, v18", "v_and_b32 v19, 0xffff, v19"] + issue()
        if s == 1: fill += ["s_add_u32 s48, s48, 2", "s_cmp_lt_u32 s48, %d" % N]
        interleave(a, m, fill)
    a("s_cbranch_scc1 K2_loop")
    a("s_waitcnt lgkmcnt(0)")
    for x in mf(1): a(x)
    prof_mid(a, 0)
    c1 = -2.0 * math.sqrt(2.0 / math.pi) * LOG2E
    a("v_mov_b32 v8, %s" % f32(c1 * 0.044715))
    a("v_mov_b32 v10, %s" % f32(c1))
    a("v_lshlrev_b32 v3, 4, v1")
    a("s_lshl_b32 s31, s30, 1")
    a("s_add_u32 s31, s31, s42               ; db")
    a("s_mul_i32 s31, s31, %d" % (88 * 1024))
    a("s_lshl_b32 s32, s28, 12")
    a("s_add_u32 s31, s31, s32")
    a("s_lshl_b32 s32, s41, 11")
    a("s_add_u32 s31, s31, s32")
    a("s_add_u32 s31, s31, 0x%x" % WS_UF)
    a("s_nop 3")
    T = 48
    for i in range(0, 16, 2): a("v_pk_mul_f32 %s, %s, %s" % (vr(T + i, 2), vr(ACC + i, 2), vr(ACC + i, 2)))
    for i in range(0, 16, 2): a("v_pk_fma_f32 %s, %s, v[8:9], v[10:11] op_sel_hi:[1,0,0]" % (vr(T + i, 2), vr(T + i, 2)))
    for i in range(0, 16, 2): a("v_pk_mul_f32 %s, %s, %s" % (vr(T + i, 2), vr(T + i, 2), vr(ACC + i, 2)))
    for i in range(16): a("v_exp_f32 v%d, v%d" % (T + i, T + i))
    for i in range(16): a("v_add_f32 v%d, 1.0, v%d" % (T + i, T + i))
    for i in range(16): a("v_rcp_f32 v%d, v%d" % (T + i, T + i))
    for i in range(0, 16, 2): a("v_pk_mul_f32 %s, %s, %s" % (vr(T + i, 2), vr(T + i, 2), vr(ACC + i, 2)))
    for i in range(8): a("v_cvt_pk_bf16_f32 v%d, v%d, v%d" % (ACC + i, T + 2 * i, T + 2 * i + 1))
    a("buffer_store_dwordx4 %s, v3, s[20:23], s31 offen" % vr(ACC, 4))
    a("buffer_store_dwordx4 %s, v3, s[20:23], s31 offen offset:1024" % vr(ACC + 4, 4))
    a("s_branch K2_done")
    a.label("K2_attn")
    a("s_sub_u32 s27, s26, 22                ; a 0..63")
    a("s_and_b32 s28, s27, 7")
    a("s_and_b32 s29, s25, 3")
    a("s_lshl_b32 s29, s29, 3")
    a("s_add_u32 s28, s28, s29               ; head")
    a("s_lshr_b32 s29, s27, 3")
    a("s_lshr_b32 s30, s25, 2")
    a("s_lshl_b32 s30, s30, 3")
    a("s_add_u32 s29, s29, s30               ; qg 0..15")
    a("s_lshl_b32 s29, s29, 2                ; qb0")
    a("s_add_u32 s30, s29, s24               ; qb")
    a("v_lshlrev_b32 v2, 4, v1               ; lane*16")
    a("s_lshl_b32 s31, s28, 16               ; head*65536")
    a("s_lshl_b32 s32, s30, 10")
    a("s_add_u32 s32, s32, s31               ; Q offset")
    Q = 4
    a("buffer_load_dwordx4 %s, v2, s[20:23], s32 offen" % vr(Q, 4))
    a("s_mul_i32 s33, s24, 3072")
    a("s_lshl_b32 s34, s29, 10")
    a("s_add_u32 s34, s34, s31")
    a("s_add_u32 s34, s34, s33")
    a("s_add_u32 s34, s34, 0x%x              ; K src" % (WS_KF - 8192))
    a("s_mov_b32 m0, s33")
    a("s_add_u32 s35, s34, 0x%x              ; V src" % (WS_VF - WS_KF))
    for i in range(3): a("buffer_load_dwordx4 v2, s[20:23], s34 offen offset:%d lds" % (1024 * i))
    a("s_add_u32 m0, s33, 12288")
    a("s_nop 0")
    for i in range(3): a("buffer_load_dwordx4 v2, s[20:23], s35 offen offset:%d lds" % (1024 * i))
    ONES = 24576
    for i in range(4): a("v_mov_b32 v%d, 0x3f803f80" % (8 + i))
    a("v_and_b32 v3, 31, v1")
    a("v_lshlrev_b32 v12, 9, v3")
    a("ds_write_b128 v12, v[8:11] offset:%d" % ONES)
    a("s_lshl_b32 s36, s24, 10")
    a("v_add_u32 v12, s36, v2")
    a("v_lshrrev_b32 v14, 5, v1              ; half")
    a("v_and_b32 v13, 15, v1")
    a("v_lshlrev_b32 v13, 4, v13")
    a("v_lshl_add_u32 v13, v14, 8, v13")
    a("v_add_u32 v13, 12288, v13")
    a("v_mov_b32 v15, %d" % ONES)
    a("v_cmp_gt_u32 vcc, 16, v3")
    a("s_nop 1")
    a("v_cndmask_b32 v13, v15, v13, vcc")
    a("v_add_u32 v13, s36, v13")
    MC, MT, CN = 16, 32, 48
    KF = 64
    S = [100, 116]
    P = 132
    VB = [140, 148]
    O = 156
    MX = 172
    BIG = 1e30
    a("v_lshlrev_b32 v14, 2, v14")
    a("v_sub_u32 v14, v3, v14")
    a("v_mov_b32 v15, %s" % f32(-BIG))
    for r in range(16):
        b = 8 * (r >> 2) + (r & 3)
        a("v_cmp_le_i32 vcc, %d, v14" % b)
        a("v_mov_b32 v%d, 0" % (O + r))
        a("s_nop 0")
        a("v_cndmask_b32 v%d, v15, 0, vcc" % (MC + r))
        a("v_cndmask_b32 v%d, 0, v15, vcc" % (MT + r))
    a("s_min_u32 s37, s30, 8")
    a("s_waitcnt vmcnt(0) lgkmcnt(0)")
    a("s_barrier")
    prof_mid(a, 0)
    for i in range(8, -1, -1): a("ds_read_b128 %s, v12 offset:%d" % (vr(KF + 4 * i, 4), i * 1024))
    def smf(dst, i, c): return "v_mfma_f32_32x32x16_bf16 %s, %s, %s, %s" % (vr(dst, 16), vr(KF + 4 * i, 4), vr(Q, 4), c)
    a("v_mov_b32 v%d, %s" % (MX, f32(-BIG)))
    a("s_waitcnt lgkmcnt(8)")
    a(smf(S[0], 8, vr(MC, 16)))
    for n, i in enumerate(range(8, -1, -1)):
        cur = S[n & 1]; nxt = S[(n + 1) & 1]
        if i > 0:
            a("s_waitcnt lgkmcnt(%d)" % (i - 1))
            a(smf(nxt, i - 1, vr(MT, 16) if i - 1 == 0 else "0"))
            a("s_nop 9" if n == 0 else "s_nop 1")
        else:
            a("s_nop 2")
        for k in range(0, 16, 2): a("v_max3_f32 v%d, v%d, v%d, v%d" % (MX, cur + k, cur + k + 1, MX))
        if i > 0:
            a("s_cmp_eq_u32 s37, %d" % n)
            a("s_cbranch_scc1 K2_p1done")
    a.label("K2_p1done")
    def vread(s, i): return ["ds_read_b128 %s, v13 offset:%d" % (vr(VB[s] + 4 * t, 4), i * 1024 + t * 512) for t in range(2)]
    for x in vread(0, 8): a(x)
    a("v_mov_b32 v%d, v%d" % (MX + 1, MX))
    a("s_nop 1")
    a("v_permlane32_swap_b32 v%d, v%d" % (MX, MX + 1))
    a("s_nop 1")
    a("v_max_f32 v%d, v%d, v%d" % (MX, MX, MX + 1))
    a("s_nop 2")
    for k in range(0, 16, 2): a("v_pk_add_f32 %s, %s, %s op_sel_hi:[1,0] neg_lo:[0,1] neg_hi:[0,1]" % (vr(MC + k, 2), vr(MC + k, 2), vr(MX, 2)))
    for k in range(0, 16, 2): a("v_pk_add_f32 %s, 0, %s op_sel_hi:[0,0] neg_lo:[0,1] neg_hi:[0,1]" % (vr(CN + k, 2), vr(MX, 2)))
    a(smf(S[0], 8, vr(MC, 16)))
    for k in range(0, 16, 2): a("v_pk_add_f32 %s, %s, %s op_sel_hi:[1,0] neg_lo:[0,1] neg_hi:[0,1]" % (vr(MT + k, 2), vr(MT + k, 2), vr(MX, 2)))
    for n, i in enumerate(range(8, -1, -1)):
        cur = S[n & 1]; nxt = S[(n + 1) & 1]
        if i > 0:
            for x in vread((n + 1) & 1, i - 1): a(x)
            a(smf(nxt, i - 1, vr(MT, 16) if i - 1 == 0 else vr(CN, 16)))
        if n == 0: a("s_nop 1")
        for k in range(8): a("v_exp_f32 v%d, v%d" % (cur + k, cur + k))
        for k in range(8, 16): a("v_exp_f32 v%d, v%d" % (cur + k, cur + k))
        for k in range(8): a("v_cvt_pk_bf16_f32 v%d, v%d, v%d" % (P + k, cur + 2 * k, cur + 2 * k + 1))
        a("s_waitcnt lgkmcnt(%d)" % (2 if i > 0 else 0))
        if i > 0: a("s_cmp_eq_u32 s37, %d" % n)
        else: a("s_nop 0")
        for t in range(2):
            a("v_mfma_f32_32x32x16_bf16 %s, %s, %s, %s" % (vr(O, 16), vr(VB[n & 1] + 4 * t, 4), vr(P + 4 * t, 4), vr(O, 16)))
        if i > 0: a("s_cbranch_scc1 K2_p2done")
    a.label("K2_p2done")
    a("s_lshl_b32 s32, s30, 15")
    a("s_lshl_b32 s33, s28, 10")
    a("s_add_u32 s32, s32, s33")
    a("s_add_u32 s32, s32, 0x%x" % WS_OF)
    a("s_waitcnt lgkmcnt(0)")
    a("s_nop 7")
    a("v_rcp_f32 v%d, v%d" % (MX, O + 8))
    a("s_nop 0")
    for k in range(0, 8, 2): a("v_pk_mul_f32 %s, %s, %s op_sel_hi:[1,0]" % (vr(O + k, 2), vr(O + k, 2), vr(MX, 2)))
    for k in range(4): a("v_cvt_pk_bf16_f32 v%d, v%d, v%d" % (P + k, O + 2 * k, O + 2 * k + 1))
    a("buffer_store_dwordx4 %s, v2, s[20:23], s32 offen" % vr(P, 4))
    a.label("K2_done")
    prof_end(a, 1, 24)
    a("s_waitcnt vmcnt(0)")
    a.label("K2_end")
    a("s_endpgm")
    return kernel_desc("k2_kernel", 176), 65536

def k3(a):
    NS, D = 4, 3
    kernel_begin(a, "k3_kernel")
    a("s_cmp_ge_u32 s2, 256")
    a("s_cbranch_scc1 K3_end")
    prof_begin(a)
    a("s_load_dwordx2 s[4:5], s[0:1], 0      ; x")
    a("s_load_dwordx2 s[6:7], s[0:1], 16     ; wo")
    a("s_load_dwordx4 s[8:11], s[0:1], 48    ; w2, b2")
    a("s_load_dwordx2 s[60:61], s[0:1], 64   ; out")
    a("s_load_dwordx2 s[62:63], s[0:1], 80   ; ws")
    a("v_and_b32 v1, 63, v0                  ; lane")
    a("v_lshrrev_b32 v2, 6, v0")
    a("s_and_b32 s25, s2, 7")
    a("s_lshr_b32 s26, s2, 3                 ; j")
    a("v_readfirstlane_b32 s24, v2           ; wave")
    a("s_and_b32 s27, s26, 7")
    a("s_lshr_b32 s28, s26, 3")
    a("s_lshr_b32 s29, s25, 1")
    a("s_lshl_b32 s29, s29, 3")
    a("s_add_u32 s29, s29, s27               ; s tile 0..31")
    a("s_and_b32 s30, s25, 1")
    a("s_lshl_b32 s30, s30, 2")
    a("s_add_u32 s30, s30, s28               ; d tile 0..7")
    a("s_lshr_b32 s41, s24, 1")
    a("s_and_b32 s42, s24, 1")
    a("s_waitcnt lgkmcnt(0)")
    srd(a, 12, 8, 1376 * 4096)
    srd(a, 16, 4, 2048 * 1024)
    srd(a, 20, 62, WS_USED)
    srd(a, 64, 10, 4096)
    srd(a, 68, 60, 2048 * 1024)
    a("v_and_b32 v2, 31, v1")
    a("v_lshrrev_b32 v3, 5, v1               ; half")
    a("v_lshlrev_b32 v20, 10, v2")
    a("v_lshl_add_u32 v21, v3, 3, v20")
    a("s_lshl_b32 s31, s29, 1")
    a("s_add_u32 s31, s31, s42               ; sb")
    a("s_lshl_b32 s45, s31, 15")
    a("s_lshl_b32 s32, s30, 7")
    a("s_add_u32 s45, s45, s32")
    a("s_lshl_b32 s32, s41, 6")
    a("s_add_u32 s45, s45, s32")
    for g in range(4): a("buffer_load_dwordx2 %s, v21, s[16:19], s45 offen offset:%d" % (vr(8 + 2 * g, 2), g * 16))
    a("v_lshlrev_b32 v22, 1, v2")
    a("s_lshl_b32 s32, s31, 6")
    a("buffer_load_ushort v23, v22, s[64:67], s32 offen")
    t_image_voff(a, 4, 4096, 16)
    a("v_add_u32 v5, %d, v4" % (8 * 4096 - 1024))
    a("v_lshlrev_b32 v6, 4, v1")
    a("s_lshl_b32 s32, s24, 16               ; 16*w rows * 4096")
    a("s_lshl_b32 s33, s29, 7")
    a("s_add_u32 s32, s32, s33               ; baseT")
    a("s_lshl_b32 s33, s30, 1")
    a("s_add_u32 s33, s33, s41")
    a("s_mul_i32 s33, s33, %d" % (88 * 1024))
    a("s_lshl_b32 s34, s42, 11")
    a("s_add_u32 s33, s33, s34")
    a("s_add_u32 s33, s33, 0x%x              ; baseF" % WS_UF)
    a("s_lshl_b32 s34, s28, 1")
    a("s_add_u32 s34, s34, s27")
    a("s_and_b32 s46, s34, 7                 ; (st+2dt)&7")
    a("s_mul_i32 s34, s46, 11")
    a("s_lshr_b32 s34, s34, 2                ; c in [0,22)")
    a("s_mov_b32 s36, 22                     ; limit")
    a("s_mov_b32 s37, 18")
    a("s_lshl_b32 s35, s24, 11               ; m0 base")
    def issue():
        L = ["s_lshl_b32 s38, s34, s37",
             "s_add_u32 s38, s38, s32",
             "s_lshl_b32 s39, s34, 12",
             "s_add_u32 s39, s39, s33",
             "s_mov_b32 m0, s35",
             "s_add_u32 s34, s34, 1",
             "buffer_load_dwordx4 v4, s[12:15], s38 offen lds",
             "buffer_load_dwordx4 v5, s[12:15], s38 offen offset:1024 lds",
             "s_add_u32 m0, s35, 8192",
             "s_cmp_lt_u32 s34, s36",
             "buffer_load_dwordx4 v6, s[20:23], s39 offen lds",
             "buffer_load_dwordx4 v6, s[20:23], s39 offen offset:1024 lds",
             "s_cselect_b32 s34, s34, 0",
             "s_add_u32 s35, s35, 16384",
             "s_and_b32 s35, s35, 0xffff"]
        return L
    for d in range(D):
        for x in issue(): a(x)
    tr_base(a, 24, 26)
    a("s_lshl_b32 s43, s42, 6")
    a("v_xor_b32 v18, s43, v24")
    a("s_lshl_b32 s43, s41, 12")
    a("s_add_u32 s43, s43, 8192")
    a("v_add_u32 v19, s43, v6")
    ACC = 32; SET = [48, 80]
    for i in range(32): a("v_mov_b32 v%d, 0" % (SET[1] + i))
    a("s_waitcnt vmcnt(%d)" % (4 * D))
    a("v_lshlrev_b32 v23, 16, v23")
    for g in range(4):
        for i in range(2):
            a("v_lshlrev_b32 v%d, 16, v%d" % (ACC + 4 * g + 2 * i, 8 + 2 * g + i))
            a("v_and_b32 v%d, 0xffff0000, v%d" % (ACC + 4 * g + 2 * i + 1, 8 + 2 * g + i))
    for i in range(16): a("v_add_f32 v%d, v23, v%d" % (ACC + i, ACC + i))
    a("s_mov_b32 s48, 0")
    def mf(s): return ["v_mfma_f32_32x32x16_bf16 %s, %s, %s, %s" % (vr(ACC, 16), vr(SET[s] + 8 * ks, 4), vr(SET[s] + 8 * ks + 4, 4), vr(ACC, 16)) for ks in range(4)]
    for part, (t0, t1) in enumerate(((0, 22), (22, 30))):
        a.label("K3_loop%d" % part)
        for s in range(2):
            if s == 1:
                lab = "K3_nosw%d" % part
                a("s_cmp_eq_u32 s48, %d" % (t1 - D - 1))
                a("s_cbranch_scc0 " + lab)
                if part == 0:
                    a("s_mov_b32 s12, s6")
                    a("s_and_b32 s13, s7, 0xffff")
                    a("s_mov_b32 s14, 0x%x" % (512 * 1024))
                    a("v_lshl_add_u32 v4, v16, 10, v17")
                    a("v_add_u32 v5, %d, v4" % (8192 - 1024))
                    a("s_lshl_b32 s32, s24, 14")
                    a("s_lshl_b32 s33, s30, 7")
                    a("s_add_u32 s32, s32, s33")
                    a("s_lshl_b32 s33, s29, 1")
                    a("s_add_u32 s33, s33, s41")
                    a("s_lshl_b32 s33, s33, 15")
                    a("s_lshl_b32 s34, s42, 11")
                    a("s_add_u32 s33, s33, s34")
                    a("s_add_u32 s33, s33, 0x%x" % WS_OF)
                    a("s_mov_b32 s34, s46")
                    a("s_mov_b32 s36, 8")
                    a("s_mov_b32 s37, 16")
                else:
                    a("s_mov_b32 s32, 0x%x" % OOB)
                    a("s_mov_b32 s33, 0x%x" % OOB)
                a.label(lab)
            a("s_waitcnt vmcnt(%d) lgkmcnt(0)" % (4 * (D - 1)))
            a("s_barrier")
            R = []
            for ks in range(4):
                A = SET[s] + 8 * ks; B = A + 4
                if part == 0: R += rd_F(A, 19, ks) + rd_T(B, 18, ks)
                else: R += rd_T(A, 18, ks) + rd_F(B, 19, ks)
            fill = R + ["v_add_u32 v18, 0x4000, v18", "v_add_u32 v19, 0x4000, v19", "v_and_b32 v18, 0xffff, v18", "v_and_b32 v19, 0xffff, v19"] + issue()
            if s == 1: fill += ["s_add_u32 s48, s48, 2", "s_cmp_lt_u32 s48, %d" % t1]
            interleave(a, mf(1 - s), fill)
        a("s_cbranch_scc1 K3_loop%d" % part)
        if part == 0:
            a("s_xor_b32 s43, s41, s42")
            a("s_lshl_b32 s44, s43, 6")
            a("s_lshl_b32 s43, s43, 12")
            a("v_xor_b32 v18, s44, v18")
            a("v_xor_b32 v19, s43, v19")
    a("s_waitcnt lgkmcnt(0)")
    for x in mf(1): a(x)
    prof_mid(a, 0)
    a("v_lshl_add_u32 v21, v3, 4, v20")
    a("s_nop 10")
    for i in range(8): a("v_cvt_pk_bf16_f32 v%d, v%d, v%d" % (48 + i, ACC + 2 * i, ACC + 2 * i + 1))
    a("s_nop 1")
    for p in range(2):
        a("v_permlane32_swap_b32 v%d, v%d" % (48 + 4 * p, 48 + 4 * p + 2))
        a("v_permlane32_swap_b32 v%d, v%d" % (48 + 4 * p + 1, 48 + 4 * p + 3))
    for p in range(2):
        a("buffer_store_dwordx4 %s, v21, s[68:71], s45 offen offset:%d" % (vr(48 + 4 * p, 4), p * 32))
    prof_end(a, 2, 24)
    a("s_waitcnt vmcnt(0)")
    a.label("K3_end")
    a("s_endpgm")
    return kernel_desc("k3_kernel", 112), 65536

def build(path, prof=False):
    Cfg.prof = prof
    a = Asm()
    d1, l1 = k1(a); d2, l2 = k2(a); d3, l3 = k3(a)
    ref = open("cdna_kernels/%s.s.ref" % KN).read().split("\n")
    hdr = [l for l in ref[:12] if l.startswith(";")]
    hdr.append("; @launch kernel=k1_kernel grid=(256,1,1) block=(256,1,1) lds=%d" % l1)
    hdr.append("; @launch kernel=k2_kernel grid=(688,1,1) block=(256,1,1) lds=%d" % l2)
    hdr.append("; @launch kernel=k3_kernel grid=(256,1,1) block=(256,1,1) lds=%d" % l3)
    hdr.append('.amdgcn_target "amdgcn-amd-amdhsa--gfx950"')
    body = a.text()
    errs = hazard.check(body)
    for e in errs: print(e)
    open(path, "w").write("\n".join(hdr) + "\n" + body + d1 + d2 + d3)
    return len(errs)

if __name__ == "__main__":
    n = build("cdna_kernels/%s.s" % KN)
    build("prof.s", prof=True)
    print("hazards:", n)
```

```python
import sys, math, struct
from asmlib import *
import hazard

KN = "parallel_sum__sliding_block__mixer_token_mlp__prompt"
WS_QF, WS_KF, WS_VF, WS_H, WS_UF, WS_OF = 0x000000, 0x200000, 0x400000, 0x600000, 0x800000, 0xA00000
WS_USED = 0xC00000
TS_OFF = 0x8000000
OOB = 0x40000000
def f32(x): return "0x%08x" % struct.unpack("<I", struct.pack("<f", x))[0]
LOG2E = 1.4426950408889634
EPS = 1e-5

class Cfg:
    prof = False
    norot = False
    unified = True
    prefc = True
    st = 'sc1'
    prio = True
    pref1 = True
    pref2 = False
    d1 = 2
    l3 = 2

def vr(b, n): return "v[%d:%d]" % (b, b + n - 1)
def sr(b, n): return "s[%d:%d]" % (b, b + n - 1)

def interleave(a, main, fill):
    n = len(main); k = 0
    for i, m in enumerate(main):
        a(m)
        upto = (len(fill) * (i + 1)) // n
        while k < upto:
            a(fill[k]); k += 1

def prof_begin(a):
    if Cfg.prof:
        a("s_memrealtime s[90:91]")
        a("s_memtime s[98:99]")
def prof_mid(a, idx):
    if Cfg.prof:
        a("s_memrealtime s[92:93]")
        a("s_memtime s[94:95]")
def prof_end(a, kidx, swave, nw=4):
    if not Cfg.prof: return
    a("s_waitcnt vmcnt(0)")
    a("s_memrealtime s[96:97]")
    a("s_load_dwordx2 s[88:89], s[0:1], 80")
    a("s_waitcnt lgkmcnt(0)")
    srd(a, 84, 88, 0x10000000)
    a("s_sub_u32 s94, s94, s98")
    a("s_mov_b32 s95, 0")
    for i in range(8): a("v_mov_b32 v%d, s%d" % (2 + i, 90 + i))
    a("s_mul_i32 s83, s2, %d" % nw)
    a("s_add_u32 s83, s83, s%d" % swave)
    a("s_lshl_b32 s83, s83, 5")
    a("s_add_u32 s83, s83, 0x%x" % (TS_OFF + kidx * 0x100000))
    a("v_mov_b32 v1, 0")
    a("s_mov_b64 exec, 1")
    a("buffer_store_dwordx4 v[2:5], v1, s[84:87], s83 offen")
    a("buffer_store_dwordx4 v[6:9], v1, s[84:87], s83 offen offset:16")

def loader_loop(a, tag, N, D, per, issue, switch=None, kidx=0, tail=None):
    a("s_mov_b32 s36, 0")
    if Cfg.prof:
        a("v_mov_b32 v30, 0"); a("v_mov_b32 v31, 0"); a("s_memrealtime s[78:79]"); a("s_memrealtime s[80:81]")
    a.label(tag + "_ld")
    a("s_cmp_lt_u32 s36, %d" % D)
    a("s_cbranch_scc1 %s_ldgo" % tag)
    a("s_waitcnt vmcnt(%d)" % (per * (D - 1)))
    if Cfg.prof:
        a("s_waitcnt lgkmcnt(0)"); a("s_mov_b32 m0, s36"); a("s_nop 0"); a("v_writelane_b32 v30, s78, m0"); a("v_writelane_b32 v31, s80, m0"); a("s_memrealtime s[78:79]")
    a("s_barrier")
    if Cfg.prof: a("s_memrealtime s[80:81]")
    a.label(tag + "_ldgo")
    if switch: switch()
    for x in issue(): a(x)
    a("s_add_u32 s36, s36, 1")
    a("s_cmp_lt_u32 s36, %d" % N)
    a("s_cbranch_scc1 %s_ld" % tag)
    extra = tail() if tail else 0
    for r in range(D - 1, -1, -1):
        a("s_waitcnt vmcnt(%d)" % (per * r + extra))
        if Cfg.prof:
            a("s_waitcnt lgkmcnt(0)"); a("s_mov_b32 m0, s36"); a("s_nop 0"); a("v_writelane_b32 v30, s78, m0"); a("v_writelane_b32 v31, s80, m0"); a("s_memrealtime s[78:79]"); a("s_add_u32 s36, s36, 1")
        a("s_barrier")
        if Cfg.prof: a("s_memrealtime s[80:81]")
    if Cfg.prof:
        a("s_load_dwordx2 s[88:89], s[0:1], 80")
        a("s_waitcnt lgkmcnt(0)"); a("s_mov_b32 m0, s36"); a("s_nop 0"); a("v_writelane_b32 v30, s78, m0"); a("v_writelane_b32 v31, s80, m0")
        srd(a, 84, 88, 0x10000000)
        a("s_lshl_b32 s83, s2, 1")
        a("s_add_u32 s83, s83, s24")
        a("s_sub_u32 s83, s83, 4")
        a("s_lshl_b32 s83, s83, 9")
        a("s_add_u32 s83, s83, 0x%x" % (TS_OFF + 0x800000 + kidx * 0x100000))
        a("v_lshlrev_b32 v29, 3, v1")
        a("s_cmp_ge_u32 s24, 6")
        a("s_cbranch_scc1 %s_nots" % tag)
        a("buffer_store_dwordx2 v[30:31], v29, s[84:87], s83 offen")
        a.label(tag + "_nots")

def k1(a):
    NS, D, N = 4, Cfg.d1, 8
    kernel_begin(a, "k1_kernel")
    a("s_cmp_ge_u32 s2, 256")
    a("s_cbranch_scc1 K1_end")
    prof_begin(a)
    a("s_load_dwordx4 s[4:7], s[0:1], 0      ; x, wqkv")
    a("s_load_dwordx2 s[8:9], s[0:1], 80     ; ws")
    a("s_load_dwordx2 s[10:11], s[0:1], 32   ; w1")
    a("v_and_b32 v1, 63, v0                  ; lane")
    a("v_lshrrev_b32 v2, 6, v0")
    a("s_and_b32 s25, s2, 7")
    a("s_lshr_b32 s26, s2, 3                 ; idx")
    a("v_readfirstlane_b32 s24, v2           ; wave")
    a("s_mov_b32 s40, 0x3f803f80             ; bf16 (1.0, 1.0)")
    a("s_and_b32 s27, s26, 3                 ; rb")
    a("s_lshr_b32 s29, s26, 2                ; ct 0..5")
    a("s_and_b32 s30, s25, 1")
    a("s_mul_i32 s30, s30, 6")
    a("s_add_u32 s30, s30, s29")
    a("s_lshr_b32 s28, s30, 2                ; kind 0=Q 1=K 2=V")
    a("s_and_b32 s30, s30, 3")
    a("s_lshr_b32 s31, s25, 1")
    a("s_lshl_b32 s31, s31, 2")
    a("s_add_u32 s31, s31, s27               ; r0/128")
    a("s_cmp_ge_u32 s26, 24")
    a("s_cbranch_scc1 K1_helper")
    a("s_cmp_lt_u32 s24, 4")
    a("s_cbranch_scc1 K1_cons")
    a("s_mul_i32 s34, s29, 11")
    a("s_lshr_b32 s34, s34, 3")
    a("s_lshl_b32 s33, s27, 1")
    a("s_add_u32 s34, s34, s33")
    a("v_lshrrev_b32 v3, 4, v1               ; l>>4")
    a("s_cmp_eq_u32 s24, 5")
    a("s_cbranch_scc1 K1_ldW")
    a("v_lshrrev_b32 v2, 3, v1               ; l>>3")
    a("v_and_b32 v12, 7, v1")
    a("v_xor_b32 v12, v12, v3                ; (l&7)^(l>>4)")
    a("v_lshlrev_b32 v12, 4, v12")
    a("v_lshl_add_u32 v4, v2, 10, v12")
    a("v_xor_b32 v5, 64, v4")
    a("v_add_u32 v5, %d, v5" % (1 * 7168))
    a("v_add_u32 v6, %d, v4" % (2 * 7168))
    a("v_add_u32 v7, %d, v5" % (2 * 7168))
    a("s_lshl_b32 s32, s31, 17               ; base = r0*1024")
    a("s_mov_b32 s33, 128")
    a("s_mov_b32 s41, %d                     ; group stride" % (32 * 1024))
    a("s_mov_b32 s35, 0")
    a("s_waitcnt lgkmcnt(0)")
    srd(a, 12, 4, 2048 * 1024)
    a("s_branch K1_ldgo0")
    a.label("K1_ldW")
    a("v_and_b32 v12, 15, v1")
    a("v_lshlrev_b32 v13, 2, v3")
    a("v_xor_b32 v12, v12, v13               ; (l&15)^((l>>4)<<2)")
    a("v_lshlrev_b32 v12, 4, v12")
    a("v_mul_u32_u24 v13, 3072, v3")
    a("v_add_u32 v4, v12, v13")
    for i in range(1, 4): a("v_add_u32 v%d, %d, v4" % (4 + i, i * (4 * 3072 - 1024)))
    a("s_lshl_b32 s32, s28, 10               ; kind*512*2")
    a("s_lshl_b32 s33, s30, 8                ; hg*128*2")
    a("s_add_u32 s32, s32, s33               ; base")
    a("s_mov_b32 s33, %d                     ; chunk stride" % (64 * 3072))
    a("s_mov_b32 s41, %d                     ; group stride" % (16 * 3072))
    a("s_mov_b32 s35, 16384")
    a("s_waitcnt lgkmcnt(0)")
    srd(a, 12, 6, 512 * 3072)
    a.label("K1_ldgo0")
    def issue():
        L = ["s_and_b32 s37, s34, 7", "s_mul_i32 s38, s37, s33", "s_add_u32 s38, s38, s32", "s_add_u32 s34, s34, 1"]
        for g in range(4):
            L.append("s_add_u32 m0, s35, %d" % (g * 4096))
            L.append("s_add_u32 s38, s38, s41" if g else "s_nop 0")
            for i in range(4): L.append("buffer_load_dwordx4 v%d, s[12:15], s38 offen offset:%d lds" % (4 + i, 1024 * i))
        L += ["s_add_u32 s35, s35, 32768", "s_and_b32 s35, s35, 0x1ffff"]
        return L
    def w1_pref_setup(first_unit_expr):
        a("s_mul_i32 s27, s27, %d" % (8 * 2752))
        a("s_lshr_b32 s28, s25, 1")
        a("s_mul_i32 s28, s28, 11")
        a("s_lshr_b32 s28, s28, 1")
        a("s_lshl_b32 s28, s28, 7")
        a("s_add_u32 s27, s27, s28")
        a("v_lshrrev_b32 v2, 3, v1")
        a("v_mul_u32_u24 v2, 2752, v2")
        a("v_and_b32 v3, 7, v1")
        a("v_lshlrev_b32 v3, 7, v3")
        a("v_min_u32 v3, 704, v3")
        a("v_add_u32 v2, v2, v3")
        srd(a, 16, 10, 2048 * 2752)
    def tail():
        if not Cfg.pref1: return 0
        a("s_lshl_b32 s27, s26, 1")
        a("s_add_u32 s27, s27, s24")
        a("s_lshl_b32 s27, s27, 1")
        a("s_add_u32 s27, s27, %d                ; unit = 160 + 2*(2*idx + w - 4)" % (160 - 8))
        w1_pref_setup(None)
        a("buffer_load_dword v8, v2, s[16:19], s27 offen")
        a("s_add_u32 s27, s27, %d" % (8 * 2752))
        a("buffer_load_dword v9, v2, s[16:19], s27 offen")
        return 2
    loader_loop(a, "K1", N, D, 16, issue, tail=tail)
    a("s_branch K1_done")
    a.label("K1_cons")
    a("s_and_b32 s41, s24, 1                 ; wx")
    a("s_lshr_b32 s42, s24, 1                ; ww")
    a("s_lshl_b32 s43, s41, 1")
    a("s_add_u32 s43, s43, s42")
    a("s_xor_b32 s44, s43, 1                 ; xb1")
    a("s_lshl_b32 s45, s42, 1")
    a("s_add_u32 s45, s45, s41")
    a("s_xor_b32 s46, s45, 1                 ; q1")
    a("v_and_b32 v2, 31, v1                  ; l&31")
    a("v_lshrrev_b32 v3, 5, v1               ; half")
    a("v_lshrrev_b32 v12, 1, v2")
    a("v_and_b32 v12, 7, v12")
    a("v_xor_b32 v12, v12, v3")
    a("v_lshlrev_b32 v12, 4, v12")
    a("v_lshl_add_u32 v12, v2, 7, v12")
    a("s_lshl_b32 s47, s43, 12")
    a("v_add_u32 v16, s47, v12")
    for ks in range(1, 4): a("v_xor_b32 v%d, %d, v16" % (16 + ks, ks << 5))
    for ks in range(4): a("v_xor_b32 v%d, 0x1000, v%d" % (20 + ks, 16 + ks))
    a("v_bfe_u32 v12, v1, 2, 2               ; r")
    a("v_lshl_add_u32 v13, v3, 3, v12        ; 8half + r")
    a("v_lshlrev_b32 v13, 8, v13")
    a("v_xor_b32 v12, s45, v12               ; q0 ^ r")
    a("v_lshl_add_u32 v13, v12, 6, v13")
    a("v_bfe_u32 v12, v1, 4, 1")
    a("v_lshl_add_u32 v13, v12, 5, v13")
    a("v_and_b32 v12, 3, v1")
    a("v_lshl_add_u32 v13, v12, 3, v13")
    a("v_add_u32 v24, 16384, v13")
    a("v_xor_b32 v25, 64, v24")
    ACC = 64
    SET = [32, 48]
    SUM, SQ, CS = 26, 27, 28
    for i in range(64): a("v_mov_b32 v%d, 0" % (ACC + i))
    for i in range(16): a("v_mov_b32 v%d, 0" % (SET[1] + i))
    for r in (SUM, SQ, CS): a("v_mov_b32 v%d, 0" % r)
    a("s_mov_b32 s48, 0                      ; t")
    a("s_mov_b32 s49, 0")
    a("s_waitcnt lgkmcnt(0)")
    srd(a, 20, 8, WS_USED)
    a("s_cmp_eq_u32 s28, 2")
    a("s_cbranch_scc1 K1_loopV")
    def reads(s, ks):
        b = SET[s]
        L = ["ds_read_b128 %s, v%d" % (vr(b, 4), 16 + ks),
             "ds_read_b64_tr_b16 %s, v24 offset:%d" % (vr(b + 8, 2), (16 * ks) * 256),
             "ds_read_b64_tr_b16 %s, v24 offset:%d" % (vr(b + 10, 2), (16 * ks + 4) * 256),
             "ds_read_b128 %s, v%d" % (vr(b + 4, 4), 20 + ks),
             "ds_read_b64_tr_b16 %s, v25 offset:%d" % (vr(b + 12, 2), (16 * ks) * 256),
             "ds_read_b64_tr_b16 %s, v25 offset:%d" % (vr(b + 14, 2), (16 * ks + 4) * 256)]
        return L
    def mf(s, isV):
        b = SET[s]; L = []
        for bw, bx in ((0, 0), (0, 1), (1, 0), (1, 1)):
            acc = vr(ACC + (bw * 2 + bx) * 16, 16)
            X = vr(b + 4 * bx, 4); W = vr(b + 8 + 4 * bw, 4)
            A, B = (X, W) if isV else (W, X)
            L.append("v_mfma_f32_32x32x16_bf16 %s, %s, %s, %s" % (acc, A, B, acc))
        return L
    def dots(s):
        b = SET[s]; L = []
        for i in range(4):
            L.append("v_dot2_f32_bf16 v%d, v%d, s40, v%d" % (SUM, b + i, SUM))
            L.append("v_dot2_f32_bf16 v%d, v%d, v%d, v%d" % (SQ, b + i, b + i, SQ))
            L.append("v_dot2_f32_bf16 v%d, v%d, s40, v%d" % (CS, b + 8 + i, CS))
        return L
    def merge(x, y):
        out = []; nx, ny = len(x), len(y); j = 0
        for i, e in enumerate(x):
            out.append(e)
            upto = ny * (i + 1) // nx
            while j < upto: out.append(y[j]); j += 1
        return out
    for isV in (False, True):
        tag = "V" if isV else "QK"
        a.label("K1_loop" + tag)
        a("s_waitcnt lgkmcnt(0)")
        a("s_barrier")
        def step(cur, rd, extra=[]):
            m = mf(cur, isV)
            a(m[0])
            for x in rd[:4]: a(x)
            a(m[1])
            for x in rd[4:]: a(x)
            interleave(a, m[2:], extra)
            for x in dots(cur): a(x)
        step(1, reads(0, 0))
        a("s_waitcnt lgkmcnt(0)")
        step(0, reads(1, 1))
        a("s_waitcnt lgkmcnt(0)")
        step(1, reads(0, 2))
        a("s_waitcnt lgkmcnt(0)")
        upd = ["s_add_u32 s50, s49, 32768", "s_and_b32 s50, s50, 0x1ffff", "s_sub_u32 s51, s50, s49", "s_mov_b32 s49, s50"]
        upd += ["v_add_u32 v%d, s51, v%d" % (r, r) for r in range(16, 26)]
        upd += ["s_add_u32 s48, s48, 1", "s_cmp_lt_u32 s48, %d" % N]
        step(0, reads(1, 3), upd)
        a("s_cbranch_scc1 K1_loop" + tag)
        a("s_waitcnt lgkmcnt(0)")
        for x in dots(1): a(x)
        for x in mf(1, isV): a(x)
        if not isV: a("s_branch K1_stats")
    a.label("K1_stats")
    prof_mid(a, 0)
    ST = 131072
    a("s_nop 2")
    for r, t in ((SUM, 29), (SQ, 30), (CS, 31)): a("v_mov_b32 v%d, v%d" % (t, r))
    a("s_nop 1")
    for r, t in ((SUM, 29), (SQ, 30), (CS, 31)): a("v_permlane32_swap_b32 v%d, v%d" % (r, t))
    a("s_nop 1")
    for r, t in ((SUM, 29), (SQ, 30), (CS, 31)): a("v_add_f32 v%d, v%d, v%d" % (r, r, t))
    a("v_mul_f32 v%d, %s, v%d      ; mean" % (SUM, f32(1.0 / 512), SUM))
    a("v_mul_f32 v29, v%d, v%d" % (SUM, SUM))
    a("s_mov_b32 s52, %s" % f32(1.0 / 512))
    a("v_fma_f32 v%d, v%d, s52, -v29      ; var" % (SQ, SQ))
    a("v_max_f32 v%d, 0, v%d" % (SQ, SQ))
    a("v_add_f32 v%d, %s, v%d" % (SQ, f32(EPS), SQ))
    a("v_rsq_f32 v%d, v%d" % (SQ, SQ))
    a("s_cmp_eq_u32 s28, 0")
    a("s_cselect_b32 s52, %s, 1.0          ; Q carries Dh^-0.5 * log2(e)" % f32(0.25 * LOG2E))
    a("v_mul_f32 v%d, s52, v%d             ; rs" % (SQ, SQ))
    a("v_lshlrev_b32 v12, 2, v2               ; (l&31)*4")
    a("s_lshl_b32 s53, s43, 7")
    a("s_add_u32 s53, s53, %d" % ST)
    a("v_add_u32 v13, s53, v12")
    a("ds_write_b32 v13, v%d" % SUM)
    a("ds_write_b32 v13, v%d offset:512" % SQ)
    a("s_lshl_b32 s53, s45, 7")
    a("s_add_u32 s53, s53, %d" % (ST + 1024))
    a("v_add_u32 v14, s53, v12")
    a("ds_write_b32 v14, v%d" % CS)
    a("s_lshl_b32 s54, s28, 21")
    a("s_lshl_b32 s55, s30, 19")
    a("s_add_u32 s54, s54, s55")
    a("s_lshl_b32 s55, s31, 12")
    a("s_add_u32 s54, s54, s55")
    a("s_waitcnt lgkmcnt(0)")
    a("s_barrier")
    a("s_cmp_eq_u32 s28, 2")
    a("s_cbranch_scc1 K1_epiV")
    xb = [43, 44]; qq = [45, 46]
    def tile_soff(bw, bx):
        a("s_lshl_b32 s56, s%d, 17" % qq[bw])
        a("s_lshl_b32 s57, s%d, 10" % xb[bx])
        a("s_add_u32 s56, s56, s57")
        a("s_add_u32 s56, s56, s54")
    a("v_xor_b32 v13, 128, v13")
    a("ds_read_b32 v29, v13")
    a("ds_read_b32 v30, v13 offset:512")
    a("v_lshlrev_b32 v15, 4, v3              ; half*16")
    for bw in range(2):
        a("s_lshl_b32 s53, s%d, 7" % qq[bw])
        a("s_add_u32 s53, s53, %d" % (ST + 1024))
        a("v_add_u32 v14, s53, v15")
        for g in range(4): a("ds_read_b128 %s, v14 offset:%d" % (vr(32 + bw * 16 + 4 * g, 4), g * 32))
    a("v_lshlrev_b32 v12, 4, v1              ; lane*16")
    a("s_waitcnt lgkmcnt(0)")
    mean = [SUM, 29]; rs = [SQ, 30]
    a("v_mov_b32 v16, v%d" % SUM); a("v_mov_b32 v18, v%d" % SQ); a("v_mov_b32 v20, v29"); a("v_mov_b32 v22, v30")
    pm = [16, 20]; pr = [18, 22]
    for bw in range(2):
        for bx in range(2):
            A = ACC + (bw * 2 + bx) * 16
            tile_soff(bw, bx)
            for i in range(0, 16, 2):
                a("v_pk_fma_f32 %s, %s, %s, %s op_sel_hi:[0,1,1] neg_lo:[1,0,0] neg_hi:[1,0,0]" % (vr(A + i, 2), vr(pm[bx], 2), vr(32 + bw * 16 + i, 2), vr(A + i, 2)))
            for i in range(0, 16, 2):
                a("v_pk_mul_f32 %s, %s, %s op_sel_hi:[0,1]" % (vr(A + i, 2), vr(pr[bx], 2), vr(A + i, 2)))
            for i in range(8):
                a("v_cvt_pk_bf16_f32 v%d, v%d, v%d" % (A + i, A + 2 * i, A + 2 * i + 1))
            a("s_add_u32 s57, s56, 65536")
            a("buffer_store_dwordx4 %s, v12, s[20:23], s56 offen @ST@" % vr(A, 4))
            a("buffer_store_dwordx4 %s, v12, s[20:23], s57 offen @ST@" % vr(A + 4, 4))
    a("s_branch K1_done")
    a.label("K1_epiV")
    a("v_xor_b32 v14, 128, v14")
    a("ds_read_b32 v29, v14")
    a("v_lshlrev_b32 v15, 4, v3              ; half*16")
    a("v_bfe_u32 v12, v1, 4, 1")
    a("v_lshlrev_b32 v12, 16, v12")
    a("v_lshl_add_u32 v12, v3, 8, v12")
    a("v_and_b32 v13, 15, v1")
    a("v_lshl_add_u32 v12, v13, 4, v12")
    a("v_mov_b32 v16, v%d" % CS)
    for bx in range(2):
        a("s_lshl_b32 s53, s%d, 7" % xb[bx])
        a("s_add_u32 s53, s53, %d" % ST)
        a("v_add_u32 v14, s53, v15")
        for g in range(4): a("ds_read_b128 %s, v14 offset:%d" % (vr(32 + 4 * g, 4), g * 32))
        for g in range(4): a("ds_read_b128 %s, v14 offset:%d" % (vr(48 + 4 * g, 4), 512 + g * 32))
        a("s_waitcnt lgkmcnt(0)")
        if bx == 0: a("v_mov_b32 v18, v29")
        pc = [16, 18]
        for bw in range(2):
            A = ACC + (bw * 2 + bx) * 16
            tile_soff(bw, bx)
            for i in range(0, 16, 2):
                a("v_pk_fma_f32 %s, %s, %s, %s op_sel_hi:[0,1,1] neg_lo:[1,0,0] neg_hi:[1,0,0]" % (vr(A + i, 2), vr(pc[bw], 2), vr(32 + i, 2), vr(A + i, 2)))
            for i in range(0, 16, 2):
                a("v_pk_mul_f32 %s, %s, %s" % (vr(A + i, 2), vr(48 + i, 2), vr(A + i, 2)))
            for i in range(8):
                a("v_cvt_pk_bf16_f32 v%d, v%d, v%d" % (A + i, A + 2 * i, A + 2 * i + 1))
            a("buffer_store_dwordx4 %s, v12, s[20:23], s56 offen @ST@" % vr(A, 4))
            a("buffer_store_dwordx4 %s, v12, s[20:23], s56 offen offset:512 @ST@" % vr(A + 4, 4))
    a("s_branch K1_done")
    a.label("K1_pref")
    if Cfg.prefc:
        a("s_getpc_b64 s[60:61]")
        a.label("K1_pc")
        a("s_sub_u32 s60, s60, K1_pc-k1_kernel")
        a("s_subb_u32 s61, s61, 0")
        a("s_mov_b32 s12, s60")
        a("s_and_b32 s13, s61, 0xffff")
        a("s_mov_b32 s14, K_code_end-k1_kernel")
        a("s_mov_b32 s15, 0x00020000")
        a("v_lshlrev_b32 v2, 7, v1")
        a("s_mov_b32 s27, 8192")
        a("s_mov_b32 s28, 16384")
        a("buffer_load_dword v4, v2, s[12:15], 0 offen")
        a("buffer_load_dword v5, v2, s[12:15], s27 offen")
        a("buffer_load_dword v6, v2, s[12:15], s28 offen")
        a("s_waitcnt vmcnt(0)")
    if Cfg.pref1:
        a("s_sub_u32 s27, s26, 24")
        a("s_lshl_b32 s27, s27, 1")
        a("s_add_u32 s27, s27, s24")
        a("s_sub_u32 s27, s27, 4                 ; 0..15")
        a("s_mul_i32 s27, s27, 10")
        a("s_waitcnt lgkmcnt(0)")
        w1_pref_setup(None)
        a("s_mov_b32 s28, 0")
        a.label("K1_prefl")
        a("buffer_load_dword v4, v2, s[16:19], s27 offen")
        a("s_add_u32 s27, s27, %d" % (8 * 2752))
        a("s_add_u32 s28, s28, 1")
        a("s_cmp_lt_u32 s28, 10")
        a("s_cbranch_scc1 K1_prefl")
    a("s_branch K1_done")
    a.label("K1_helper")
    a("s_cmp_ge_u32 s24, 4")
    a("s_cbranch_scc1 K1_pref")
    a("s_waitcnt lgkmcnt(0)")
    srd(a, 12, 4, 2048 * 1024)
    srd(a, 20, 8, WS_USED)
    a("s_sub_u32 s27, s26, 24")
    a("s_lshl_b32 s27, s27, 3")
    a("s_add_u32 s27, s27, s25               ; hidx 0..63")
    a("s_lshl_b32 s27, s27, 15               ; *32 rows*1024")
    a("s_lshl_b32 s28, s24, 13               ; w*8 rows")
    a("s_add_u32 s27, s27, s28")
    a("s_add_u32 s28, s27, 4096")
    a("v_lshrrev_b32 v2, 4, v1")
    a("v_and_b32 v3, 15, v1")
    a("v_lshlrev_b32 v3, 4, v3")
    a("v_lshl_add_u32 v2, v2, 10, v3")
    for g in range(2):
        for j in range(4):
            a("buffer_load_dwordx4 %s, v2, s[12:15], s%d offen offset:%d" % (vr(16 + g * 16 + j * 4, 4), 27 + g, j * 256))
    a("s_add_u32 s27, s27, 0x%x" % WS_H)
    a("s_add_u32 s28, s28, 0x%x" % WS_H)
    a("s_mov_b32 s52, %s" % f32(1.0 / 512))
    a("s_mov_b32 s53, 0xffff0000")
    for g in range(2):
        X = 16 + g * 16
        a("v_mov_b32 v4, 0"); a("v_mov_b32 v5, 0")
        a("s_waitcnt vmcnt(%d)" % (4))
        for i in range(16):
            a("v_dot2_f32_bf16 v4, v%d, s40, v4" % (X + i))
            a("v_dot2_f32_bf16 v5, v%d, v%d, v5" % (X + i, X + i))
        a("s_nop 2")
        for n in (8, 4, 2, 1):
            a("v_add_f32_dpp v4, v4, v4 row_ror:%d row_mask:0xf bank_mask:0xf" % n)
            a("v_add_f32_dpp v5, v5, v5 row_ror:%d row_mask:0xf bank_mask:0xf" % n)
            a("s_nop 0")
        a("v_mul_f32 v4, s52, v4                ; mean")
        a("v_mul_f32 v6, v4, v4")
        a("v_fma_f32 v5, v5, s52, -v6           ; var")
        a("v_max_f32 v5, 0, v5")
        a("v_add_f32 v6, %s, v5" % f32(EPS))
        a("v_rsq_f32 v6, v6")
        a("s_nop 0")
        a("v_mul_f32 v7, v6, v6")
        a("v_mul_f32 v7, v7, v5")
        a("v_add_f32 v7, %s, v7" % f32(EPS))
        a("v_rsq_f32 v7, v7                     ; r2")
        a("s_nop 0")
        a("v_mul_f32 v6, v6, v7                 ; a = r1*r2")
        a("v_mul_f32 v8, v4, v6")
        a("v_sub_f32 v8, 0, v8                  ; c = -mean*a")
        for i in range(16):
            t = 10 + 2 * (i & 1)
            a("v_lshlrev_b32 v%d, 16, v%d" % (t, X + i))
            a("v_and_b32 v%d, s53, v%d" % (t + 1, X + i))
            a("v_pk_fma_f32 %s, %s, v[6:7], v[8:9] op_sel_hi:[1,0,0]" % (vr(t, 2), vr(t, 2)))
            a("v_cvt_pk_bf16_f32 v%d, v%d, v%d" % (X + i, t, t + 1))
        for j in range(4):
            a("buffer_store_dwordx4 %s, v2, s[20:23], s%d offen offset:%d @ST@" % (vr(X + j * 4, 4), 27 + g, j * 256))
    a.label("K1_done")
    prof_end(a, 0, 24, 6)
    a("s_waitcnt vmcnt(0)")
    a.label("K1_end")
    a("s_endpgm")
    return kernel_desc("k1_kernel", 128), 131072 + 1536

def t_image_voff(a, dst, stride_s_or_imm, tmp, lane=1):
    a("v_lshrrev_b32 v%d, 3, v%d" % (tmp, lane))
    a("v_bfe_u32 v%d, v%d, 4, 1" % (tmp + 1, lane))
    a("v_lshlrev_b32 v%d, 2, v%d" % (tmp + 1, tmp + 1))
    a("v_and_b32 v%d, 7, v%d" % (dst, lane))
    a("v_xor_b32 v%d, v%d, v%d" % (tmp + 1, tmp + 1, dst))
    a("v_lshlrev_b32 v%d, 4, v%d" % (tmp + 1, tmp + 1))
    a("v_mul_u32_u24 v%d, %d, v%d" % (dst, stride_s_or_imm, tmp))
    a("v_add_u32 v%d, v%d, v%d" % (dst, dst, tmp + 1))

def tr_base(a, dst, tmp, lane=1):
    a("v_lshrrev_b32 v%d, 5, v%d            ; half" % (dst, lane))
    a("v_bfe_u32 v%d, v%d, 2, 2             ; r" % (tmp, lane))
    a("v_lshl_add_u32 v%d, v%d, 2, v%d" % (dst, dst, tmp))
    a("v_lshlrev_b32 v%d, 7, v%d            ; (4half+r)*128" % (dst, dst))
    a("v_bfe_u32 v%d, v%d, 3, 1             ; r>>1" % (tmp, lane))
    a("v_lshl_add_u32 v%d, v%d, 6, v%d" % (dst, tmp, dst))
    a("v_bfe_u32 v%d, v%d, 4, 1             ; g&1" % (tmp, lane))
    a("v_lshl_add_u32 v%d, v%d, 5, v%d" % (dst, tmp, dst))
    a("v_and_b32 v%d, 3, v%d                ; cq" % (tmp, lane))
    a("v_lshl_add_u32 v%d, v%d, 3, v%d" % (dst, tmp, dst))

def rd_T(dst, addr, ks, off=0): return ["ds_read_b64_tr_b16 %s, v%d offset:%d" % (vr(dst + 2 * j, 2), addr, off + (16 * ks + 8 * j) * 128) for j in range(2)]
def rd_F(dst, addr, ks, off=0): return ["ds_read_b128 %s, v%d offset:%d" % (vr(dst, 4), addr, off + ks * 1024)]

def k2(a):
    NS, D, N = 4, 3, 32
    kernel_begin(a, "k2_kernel")
    a("s_cmp_ge_u32 s2, 512")
    a("s_cbranch_scc1 K2_end")
    prof_begin(a)
    a("s_load_dwordx4 s[4:7], s[0:1], 32     ; w1, b1")
    a("s_load_dwordx2 s[8:9], s[0:1], 80     ; ws")
    a("v_and_b32 v1, 63, v0                  ; lane")
    a("v_lshrrev_b32 v2, 6, v0")
    a("s_and_b32 s25, s2, 7")
    a("s_lshr_b32 s26, s2, 3                 ; j")
    a("v_readfirstlane_b32 s24, v2           ; wave")
    a("s_cmp_ge_u32 s26, 22")
    a("s_cbranch_scc1 K2_attn")
    a("s_lshr_b32 s27, s25, 1                ; fg")
    a("s_mul_i32 s27, s27, 22")
    a("s_add_u32 s27, s27, s26               ; t 0..87")
    a("s_lshr_b32 s28, s27, 2                ; f tile")
    a("s_and_b32 s29, s27, 3                 ; dl")
    a("s_and_b32 s30, s25, 1")
    a("s_lshl_b32 s30, s30, 2")
    a("s_add_u32 s30, s30, s29               ; d tile")
    if Cfg.prio: a("s_setprio 2")
    a("s_cmp_lt_u32 s24, 4")
    a("s_cbranch_scc1 K2_cons")
    t_image_voff(a, 4, 2752, 16)
    a("v_lshl_add_u32 v8, v16, 10, v17")
    for i in range(1, 4):
        a("v_add_u32 v%d, %d, v4" % (4 + i, i * (8 * 2752 - 1024)))
        a("v_add_u32 v%d, %d, v8" % (8 + i, i * (8192 - 1024)))
    a("s_lshl_b32 s32, s28, 7                ; w1 base")
    a("s_lshl_b32 s33, s30, 7")
    a("s_add_u32 s33, s33, 0x%x              ; h base" % WS_H)
    a("s_lshl_b32 s34, s29, 3")
    a("s_mul_i32 s35, s28, 6")
    a("s_add_u32 s34, s34, s35               ; phase")
    if Cfg.norot: a("s_mov_b32 s34, 0")
    a("s_mov_b32 s35, 0")
    a("s_waitcnt lgkmcnt(0)")
    srd(a, 12, 4, 2048 * 2752)
    srd(a, 20, 8, WS_USED)
    def issue():
        L = ["s_and_b32 s37, s34, 31",
             "s_mul_i32 s38, s37, %d" % (64 * 2752),
             "s_add_u32 s38, s38, s32",
             "s_lshl_b32 s39, s37, 16",
             "s_add_u32 s39, s39, s33"]
        for g in range(2):
            L.append("s_add_u32 m0, s35, %d" % (g * 4096))
            L.append("s_add_u32 s38, s38, %d" % (32 * 2752) if g else "s_add_u32 s34, s34, 1")
            for i in range(4): L.append("buffer_load_dwordx4 v%d, s[12:15], s38 offen offset:%d lds" % (4 + i, 1024 * i))
            L.append("s_add_u32 m0, s35, %d" % (8192 + g * 4096))
            L.append("s_add_u32 s39, s39, %d" % (32 * 1024) if g else "s_nop 0")
            for i in range(4): L.append("buffer_load_dwordx4 v%d, s[20:23], s39 offen offset:%d lds" % (8 + i, 1024 * i))
        L += ["s_add_u32 s35, s35, 16384", "s_and_b32 s35, s35, 0xffff"]
        return L
    loader_loop(a, "K2", N, D, 16, issue, kidx=1)
    a("s_branch K2_done")
    a.label("K2_cons")
    a("s_lshr_b32 s41, s24, 1                ; wm")
    a("s_and_b32 s42, s24, 1                 ; wn")
    a("v_lshrrev_b32 v3, 5, v1")
    a("v_lshlrev_b32 v3, 3, v3               ; half*8")
    a("s_lshl_b32 s31, s28, 7")
    a("s_lshl_b32 s32, s41, 6")
    a("s_add_u32 s31, s31, s32")
    a("s_waitcnt lgkmcnt(0)")
    srd(a, 16, 6, 2752)
    srd(a, 20, 8, WS_USED)
    for g in range(4): a("buffer_load_dwordx2 %s, v3, s[16:19], s31 offen offset:%d" % (vr(8 + 2 * g, 2), g * 16))
    tr_base(a, 18, 16)
    a("s_lshl_b32 s43, s41, 6")
    a("s_lshl_b32 s44, s42, 6")
    a("s_add_u32 s44, s44, 8192")
    a("v_xor_b32 v19, s44, v18               ; B addr")
    a("v_xor_b32 v18, s43, v18               ; A addr")
    ACC = 32; SET = [48, 80]
    for i in range(32): a("v_mov_b32 v%d, 0" % (SET[1] + i))
    a("s_waitcnt vmcnt(0)")
    for g in range(4):
        for i in range(2):
            a("v_lshlrev_b32 v%d, 16, v%d" % (ACC + 4 * g + 2 * i, 8 + 2 * g + i))
            a("v_and_b32 v%d, 0xffff0000, v%d" % (ACC + 4 * g + 2 * i + 1, 8 + 2 * g + i))
    a("s_mov_b32 s48, 0")
    def mf(s): return ["v_mfma_f32_32x32x16_bf16 %s, %s, %s, %s" % (vr(ACC, 16), vr(SET[s] + 8 * ks, 4), vr(SET[s] + 8 * ks + 4, 4), vr(ACC, 16)) for ks in range(4)]
    a.label("K2_loop")
    for s in range(2):
        a("s_waitcnt lgkmcnt(0)")
        a("s_barrier")
        R = []
        for ks in range(4):
            R += rd_T(SET[s] + 8 * ks, 18, ks, s * 16384) + rd_T(SET[s] + 8 * ks + 4, 19, ks, s * 16384)
        if s == 1: R += ["v_xor_b32 v18, 0x8000, v18", "v_xor_b32 v19, 0x8000, v19", "s_add_u32 s48, s48, 2", "s_cmp_lt_u32 s48, %d" % N]
        interleave(a, mf(1 - s), R)
    a("s_cbranch_scc1 K2_loop")
    a("s_waitcnt lgkmcnt(0)")
    for x in mf(1): a(x)
    prof_mid(a, 0)
    c1 = -2.0 * math.sqrt(2.0 / math.pi) * LOG2E
    a("v_mov_b32 v8, %s" % f32(c1 * 0.044715))
    a("v_mov_b32 v10, %s" % f32(c1))
    a("v_lshlrev_b32 v3, 4, v1")
    a("s_lshl_b32 s31, s30, 1")
    a("s_add_u32 s31, s31, s42               ; db")
    a("s_mul_i32 s31, s31, %d" % (88 * 1024))
    a("s_lshl_b32 s32, s28, 12")
    a("s_add_u32 s31, s31, s32")
    a("s_lshl_b32 s32, s41, 11")
    a("s_add_u32 s31, s31, s32")
    a("s_add_u32 s31, s31, 0x%x" % WS_UF)
    a("s_nop 3")
    T = 48
    for i in range(0, 16, 2): a("v_pk_mul_f32 %s, %s, %s" % (vr(T + i, 2), vr(ACC + i, 2), vr(ACC + i, 2)))
    for i in range(0, 16, 2): a("v_pk_fma_f32 %s, %s, v[8:9], v[10:11] op_sel_hi:[1,0,0]" % (vr(T + i, 2), vr(T + i, 2)))
    for i in range(0, 16, 2): a("v_pk_mul_f32 %s, %s, %s" % (vr(T + i, 2), vr(T + i, 2), vr(ACC + i, 2)))
    for i in range(16): a("v_exp_f32 v%d, v%d" % (T + i, T + i))
    for i in range(16): a("v_add_f32 v%d, 1.0, v%d" % (T + i, T + i))
    for i in range(16): a("v_rcp_f32 v%d, v%d" % (T + i, T + i))
    for i in range(0, 16, 2): a("v_pk_mul_f32 %s, %s, %s" % (vr(T + i, 2), vr(T + i, 2), vr(ACC + i, 2)))
    for i in range(8): a("v_cvt_pk_bf16_f32 v%d, v%d, v%d" % (ACC + i, T + 2 * i, T + 2 * i + 1))
    a("buffer_store_dwordx4 %s, v3, s[20:23], s31 offen @ST@" % vr(ACC, 4))
    a("buffer_store_dwordx4 %s, v3, s[20:23], s31 offen offset:1024 @ST@" % vr(ACC + 4, 4))
    a("s_branch K2_done")
    a.label("K2_attn")
    a("s_sub_u32 s27, s26, 22")
    a("s_sub_u32 s28, s26, 44")
    a("s_cmp_ge_u32 s26, 54")
    a("s_cselect_b32 s27, s28, s27")
    a("s_mov_b32 s42, 2")
    a("s_mov_b32 s43, 0                      ; half")
    a("s_cbranch_scc1 K2_free")
    a("s_cmp_lt_u32 s26, 32")
    a("s_cbranch_scc1 K2_free")
    a("s_cmp_ge_u32 s24, 4")
    a("s_cbranch_scc1 K2_end")
    a("s_sub_u32 s27, s26, 12                ; j = 32, 33 -> pairs 20, 21")
    a("s_cmp_lt_u32 s26, 34")
    a("s_cbranch_scc1 K2_go")
    a("s_add_u32 s27, s26, 10")
    a("s_and_b32 s43, s27, 1")
    a("s_lshr_b32 s27, s27, 1")
    a("s_mov_b32 s42, 1")
    a("s_branch K2_go")
    a.label("K2_free")
    a("s_cmp_ge_u32 s24, 4")
    a("s_cbranch_scc1 K2_pref")
    a.label("K2_go")
    a("s_sub_u32 s27, 31, s27")
    a("s_and_b32 s28, s27, 3")
    a("s_lshl_b32 s29, s25, 2")
    a("s_add_u32 s28, s28, s29               ; head")
    a("s_lshr_b32 s29, s27, 2")
    a("s_lshl_b32 s29, s29, 1")
    a("s_add_u32 s29, s29, s43")
    a("s_lshl_b32 s29, s29, 2                ; qb0")
    a("s_add_u32 s30, s29, s24               ; qb")
    a("v_lshlrev_b32 v2, 4, v1               ; lane*16")
    a("s_lshl_b32 s31, s28, 16               ; head*65536")
    a("s_lshl_b32 s32, s30, 10")
    a("s_add_u32 s32, s32, s31               ; Q offset")
    a("s_add_u32 s38, s32, 4096")
    Q = 4; Q2 = 8
    a("s_lshl_b32 s33, s24, 12")
    a("s_lshl_b32 s34, s29, 10")
    a("s_add_u32 s34, s34, s31")
    a("s_add_u32 s34, s34, s33")
    a("s_add_u32 s34, s34, 0x%x              ; K src" % (WS_KF - 8192))
    a("s_mov_b32 m0, s33")
    a("s_add_u32 s40, s42, 2")
    a("s_cmp_ge_u32 s24, s40")
    a("s_cselect_b32 s34, 0x%x, s34" % OOB)
    a("s_cmp_eq_u32 s42, 1")
    a("s_cselect_b32 s38, 0x%x, s38" % OOB)
    a("s_add_u32 s35, s34, 0x%x              ; V src" % (WS_VF - WS_KF))
    a("s_waitcnt lgkmcnt(0)")
    srd(a, 20, 8, WS_USED)
    for i in range(4): a("buffer_load_dwordx4 v2, s[20:23], s34 offen offset:%d lds" % (1024 * i))
    a("buffer_load_dwordx4 %s, v2, s[20:23], s32 offen" % vr(Q, 4))
    a("s_add_u32 m0, s33, 16384")
    a("buffer_load_dwordx4 %s, v2, s[20:23], s38 offen" % vr(Q2, 4))
    for i in range(4): a("buffer_load_dwordx4 v2, s[20:23], s35 offen offset:%d lds" % (1024 * i))
    MX, M, K2R, CN, S, O, VB = 16, 18, 28, 32, [48, 64], 80, [96, 104]
    KR = [96, 100, 104, 108, 112, 116]
    BIG = 1e30
    SM = 44
    ONES = 32768
    for i in range(4): a("v_mov_b32 v%d, 0x3f803f80" % (O + i))
    a("v_and_b32 v3, 31, v1")
    a("v_lshlrev_b32 v12, 9, v3")
    a("ds_write_b128 v12, %s offset:%d" % (vr(O, 4), ONES))
    a("s_lshl_b32 s36, s24, 10")
    a("v_add_u32 v12, s36, v2")
    a("v_lshrrev_b32 v14, 5, v1              ; half")
    a("v_and_b32 v13, 15, v1")
    a("v_lshlrev_b32 v13, 4, v13")
    a("v_lshl_add_u32 v13, v14, 8, v13")
    a("v_add_u32 v13, 16384, v13")
    a("v_mov_b32 v15, %d" % ONES)
    a("v_cmp_gt_u32 vcc, 16, v3")
    a("v_lshlrev_b32 v14, 2, v14")
    a("v_sub_u32 v14, v3, v14")
    a("v_cndmask_b32 v13, v15, v13, vcc")
    a("v_add_u32 v13, s36, v13")
    for r in range(16):
        a("v_cmp_le_i32 %s, %d, v14" % (sr(SM + 2 * r, 2), 8 * (r >> 2) + (r & 3)))
    a("v_mov_b32 v14, 0xffff")
    a("v_mov_b32 v15, 0xffff0000")
    for k in range(8):
        a("v_cndmask_b32 v%d, 0, v14, %s" % (M + k, sr(SM + 4 * k, 2)))
        a("v_cndmask_b32 v3, 0, v15, %s" % sr(SM + 4 * k + 2, 2))
        a("v_or_b32 v%d, v%d, v3" % (M + k, M + k))
    a("s_lshl_b32 s32, s30, 15")
    a("s_lshl_b32 s33, s28, 10")
    a("s_add_u32 s32, s32, s33")
    a("s_add_u32 s32, s32, 0x%x              ; O offset" % WS_OF)
    a("s_mov_b32 s39, 0                      ; unit")
    a("s_waitcnt vmcnt(0) lgkmcnt(0)")
    a("s_barrier")
    prof_mid(a, 0)
    a.label("K2_unit")
    def kread(dst, i): return "ds_read_b128 %s, v12 offset:%d" % (vr(dst, 4), i * 1024)
    def vread(s, i): return ["ds_read_b128 %s, v13 offset:%d" % (vr(VB[s] + 4 * t, 4), i * 1024 + t * 512) for t in range(2)]
    def smf(dst, k, c): return "v_mfma_f32_32x32x16_bf16 %s, %s, %s, %s" % (vr(dst, 16), vr(k, 4), vr(Q, 4), c)
    def pv(v, p, c=None): return "v_mfma_f32_32x32x16_bf16 %s, %s, %s, %s" % (vr(O, 16), vr(v, 4), vr(p, 4), c or vr(O, 16))
    order = [8, 0, 7, 6, 5, 4, 3, 2, 1]
    for n in range(6): a(kread(KR[n], order[n]))
    a("s_min_u32 s37, s30, 7")
    a("s_waitcnt lgkmcnt(5)")
    a(smf(CN, KR[0], "0"))
    a(kread(KR[0], order[6]))
    a("s_cmp_lt_u32 s30, 8")
    a("s_cbranch_scc1 K2_notail")
    a("s_waitcnt lgkmcnt(5)")
    a(smf(O, KR[1], "0"))
    a("s_branch K2_tailok")
    a.label("K2_notail")
    for r in range(16): a("v_mov_b32 v%d, %s" % (O + r, f32(-BIG)))
    a.label("K2_tailok")
    a(kread(KR[1], order[7]))
    a("s_waitcnt lgkmcnt(5)")
    a(smf(S[0], KR[2], "0"))
    a(kread(KR[2], order[8]))
    a("s_nop 7")
    for r in range(16): a("v_cndmask_b32 v%d, v%d, v%d, %s" % (CN + r, O + r, CN + r, sr(SM + 2 * r, 2)))
    a("v_max_f32 v%d, v%d, v%d" % (MX, CN, CN + 1))
    for k in range(2, 16, 2): a("v_max3_f32 v%d, v%d, v%d, v%d" % (MX, CN + k, CN + k + 1, MX))
    for n in range(7):
        a("s_cmp_eq_u32 s37, %d" % n)
        a("s_cbranch_scc1 K2_p1done")
        cur = S[n & 1]; nxt = S[(n + 1) & 1]
        if n < 6:
            a("s_waitcnt lgkmcnt(%d)" % (5 - n))
            a(smf(nxt, KR[(3 + n) % 6], "0"))
        else:
            a("s_nop 1")
        for k in range(0, 16, 2): a("v_max3_f32 v%d, v%d, v%d, v%d" % (MX, cur + k, cur + k + 1, MX))
    a.label("K2_p1done")
    a("s_waitcnt lgkmcnt(0)")
    a(kread(K2R, 7))
    for x in vread(0, 8) + vread(1, 0): a(x)
    a("v_mov_b32 v%d, v%d" % (MX + 1, MX))
    a("s_nop 1")
    a("v_permlane32_swap_b32 v%d, v%d" % (MX, MX + 1))
    a("s_nop 1")
    a("v_max_f32 v%d, v%d, v%d" % (MX, MX, MX + 1))
    for k in range(0, 16, 2): a("v_pk_add_f32 %s, %s, %s op_sel_hi:[1,0] neg_lo:[0,1] neg_hi:[0,1]" % (vr(S[0] + k, 2), vr(CN + k, 2), vr(MX, 2)))
    for k in range(0, 16, 2): a("v_pk_add_f32 %s, 0, %s op_sel_hi:[0,0] neg_lo:[0,1] neg_hi:[0,1]" % (vr(CN + k, 2), vr(MX, 2)))
    def E(cur): return ["v_exp_f32 v%d, v%d" % (cur + k, cur + k) for k in range(16)] + ["v_cvt_pk_bf16_f32 v%d, v%d, v%d" % (cur + k, cur + 2 * k, cur + 2 * k + 1) for k in range(8)]
    def emit_with(main, ins):
        for p, x in enumerate(main):
            for y in ins.get(p, []): a(y)
            a(x)
    emit_with(E(S[0]), {1: ["s_waitcnt lgkmcnt(4)", smf(S[1], K2R, vr(CN, 16)), kread(K2R, 6)]})
    for k in range(8): a("v_and_b32 v%d, v%d, v%d" % (S[0] + 8 + k, S[0] + k, M + k))
    for k in range(8): a("v_xor_b32 v%d, v%d, v%d" % (S[0] + k, S[0] + k, S[0] + 8 + k))
    pv0 = [pv(VB[0], S[0] + 8, "0"), pv(VB[0] + 4, S[0] + 12), pv(VB[1], S[0]), pv(VB[1] + 4, S[0] + 4)]
    a("s_waitcnt lgkmcnt(0)")
    a("s_cmp_eq_u32 s37, 0")
    a("s_cbranch_scc1 K2_x0")
    emit_with(E(S[1]), {0: [pv0[0]], 4: [pv0[1]] + vread(0, 7), 8: [pv0[2]], 12: [pv0[3]], 16: [smf(S[0], K2R, vr(CN, 16)), kread(K2R, 5)]})
    a("s_nop 0")
    for n in range(2, 8):
        cur = S[n & 1]; prv = S[(n + 1) & 1]
        a("s_cmp_eq_u32 s37, %d" % (n - 1))
        a("s_cbranch_scc1 K2_x%s" % ("A" if prv == S[0] else "B"))
        ins = {0: ["s_waitcnt lgkmcnt(0)", pv(VB[0], prv)], 4: [pv(VB[0] + 4, prv + 4)] + vread(0, 8 - n)}
        if n < 7:
            ins[8] = [smf(prv, K2R, vr(CN, 16))] + ([kread(K2R, 6 - n)] if n < 6 else [])
        emit_with(E(cur), ins)
    a.label("K2_xB")
    a("s_waitcnt lgkmcnt(0)")
    a("s_nop 0")
    a(pv(VB[0], S[1])); a(pv(VB[0] + 4, S[1] + 4))
    a("s_branch K2_p2done")
    a.label("K2_xA")
    a("s_waitcnt lgkmcnt(0)")
    a(pv(VB[0], S[0])); a(pv(VB[0] + 4, S[0] + 4))
    a("s_branch K2_p2done")
    a.label("K2_x0")
    for x in pv0: a(x)
    a.label("K2_p2done")
    a("v_add_u32 v12, 4096, v12")
    a("v_add_u32 v13, 4096, v13")
    for k in range(4): a("v_mov_b32 v%d, v%d" % (Q + k, Q2 + k))
    a("s_add_u32 s30, s30, 4")
    a("s_add_u32 s39, s39, 1")
    a("s_nop 3")
    a("v_rcp_f32 v%d, v%d" % (MX, O + 8))
    a("s_nop 0")
    for k in range(0, 8, 2): a("v_pk_mul_f32 %s, %s, %s op_sel_hi:[1,0]" % (vr(O + k, 2), vr(O + k, 2), vr(MX, 2)))
    for k in range(4): a("v_cvt_pk_bf16_f32 v%d, v%d, v%d" % (K2R + k, O + 2 * k, O + 2 * k + 1))
    a("buffer_store_dwordx4 %s, v2, s[20:23], s32 offen @ST@" % vr(K2R, 4))
    a("s_add_u32 s32, s32, %d" % (4 << 15))
    a("s_cmp_lt_u32 s39, s42")
    a("s_cbranch_scc1 K2_unit")
    a("s_branch K2_done")
    a.label("K2_pref")
    if Cfg.pref2:
        a("s_load_dwordx2 s[44:45], s[0:1], 48     ; w2")
        a("s_load_dwordx2 s[46:47], s[0:1], 16     ; wo")
        a("s_load_dwordx2 s[48:49], s[0:1], 0    ; x")
        a("v_lshrrev_b32 v2, 3, v1")
        a("v_and_b32 v3, 7, v1")
        a("v_lshlrev_b32 v3, 7, v3")
        a("v_lshl_add_u32 v2, v2, 12, v3")
        a("v_lshrrev_b32 v4, 2, v1")
        a("v_and_b32 v3, 3, v1")
        a("v_lshlrev_b32 v3, 7, v3")
        a("v_lshl_add_u32 v4, v4, 10, v3")
        a("s_lshr_b32 s28, s25, 1                ; sg")
        a("s_and_b32 s29, s25, 1                 ; dg")
        a("s_lshl_b32 s30, s27, 15")
        a("s_lshl_b32 s31, s28, 10")
        a("s_add_u32 s30, s30, s31               ; w2 offset")
        a("s_lshl_b32 s31, s27, 14")
        a("s_lshl_b32 s32, s29, 9")
        a("s_add_u32 s31, s31, s32")
        a("s_lshl_b32 s34, s28, 19")
        a("s_add_u32 s33, s31, s34               ; x offset")
        a("s_add_u32 s35, s33, %d" % (20 << 14))
        a("s_cmp_lt_u32 s27, 12")
        a("s_cselect_b32 s35, s35, 0x%x" % OOB)
        a("s_add_u32 s36, s31, %d" % (20 << 14))
        a("s_waitcnt lgkmcnt(0)")
        srd(a, 12, 44, 1376 * 4096)
        srd(a, 16, 46, 512 * 1024)
        srd(a, 20, 48, 2048 * 1024)
        a("s_barrier")
        for i in range(9):
            a("buffer_load_dword v%d, v2, s[12:15], s30 offen" % (8 + i))
            a("s_add_u32 s30, s30, %d" % (20 << 15))
        a("buffer_load_dword v18, v4, s[16:19], s31 offen")
        a("buffer_load_dword v19, v4, s[16:19], s36 offen")
        a("buffer_load_dword v20, v4, s[20:23], s33 offen")
        a("buffer_load_dword v21, v4, s[20:23], s35 offen")
    a.label("K2_done")
    prof_end(a, 1, 24, 5)
    a("s_waitcnt vmcnt(0)")
    a.label("K2_end")
    a("s_endpgm")
    return kernel_desc("k2_kernel", 120), 65536

def k3(a):
    NS, D = 4, 3
    kernel_begin(a, "k3_kernel")
    a("s_cmp_ge_u32 s2, 256")
    a("s_cbranch_scc1 K3_end")
    prof_begin(a)
    a("s_load_dwordx2 s[4:5], s[0:1], 0      ; x")
    a("s_load_dwordx2 s[6:7], s[0:1], 16     ; wo")
    a("s_load_dwordx4 s[8:11], s[0:1], 48    ; w2, b2")
    a("s_load_dwordx2 s[60:61], s[0:1], 64   ; out")
    a("s_load_dwordx2 s[62:63], s[0:1], 80   ; ws")
    a("v_and_b32 v1, 63, v0                  ; lane")
    a("v_lshrrev_b32 v2, 6, v0")
    a("s_and_b32 s25, s2, 7")
    a("s_lshr_b32 s26, s2, 3                 ; j")
    a("v_readfirstlane_b32 s24, v2           ; wave")
    a("s_and_b32 s27, s26, 7")
    a("s_lshr_b32 s28, s26, 3")
    a("s_lshr_b32 s29, s25, 1")
    a("s_lshl_b32 s29, s29, 3")
    a("s_add_u32 s29, s29, s27               ; s tile 0..31")
    a("s_and_b32 s30, s25, 1")
    a("s_lshl_b32 s30, s30, 2")
    a("s_add_u32 s30, s30, s28               ; d tile 0..7")
    a("s_cmp_lt_u32 s24, 4")
    a("s_cbranch_scc1 K3_cons")
    L3 = Cfg.l3; G = 4 // L3 if L3 > 1 else None
    a("s_lshl_b32 s34, s28, 1")
    a("s_add_u32 s34, s34, s27")
    a("s_and_b32 s46, s34, 7                 ; (st+2dt)&7")
    if Cfg.norot: a("s_mov_b32 s46, 0")
    a("s_mul_i32 s34, s46, 11")
    a("s_lshr_b32 s34, s34, 2                ; c in [0,22)")
    a("s_mov_b32 s40, 22                     ; limit")
    a("s_bfe_u32 s47, s24, 0x10001")
    a("s_lshl_b32 s35, s47, 12")
    a("s_bitcmp1_b32 s24, 0")
    a("s_cbranch_scc1 K3_ldF")
    t_image_voff(a, 4, 4096, 16)
    for i in range(1, 4): a("v_add_u32 v%d, %d, v4" % (4 + i, i * (8 * 4096 - 1024)))
    a("s_mov_b32 s41, %d                     ; group stride" % (32 * 4096))
    a("s_mul_i32 s32, s47, s41")
    a("s_lshl_b32 s33, s29, 7")
    a("s_add_u32 s32, s32, s33               ; base")
    a("s_mov_b32 s37, 18")
    a("s_waitcnt lgkmcnt(0)")
    srd(a, 12, 8, 1376 * 4096)
    a("s_branch K3_ld0")
    a.label("K3_ldF")
    for i in range(4): a("v_lshlrev_b32 v%d, 4, v1" % (4 + i))
    a("s_mov_b32 s41, %d                     ; group stride" % (88 * 1024))
    a("s_lshl_b32 s32, s30, 1")
    a("s_add_u32 s32, s32, s47")
    a("s_mul_i32 s32, s32, s41")
    a("s_add_u32 s32, s32, 0x%x              ; base" % WS_UF)
    a("s_mov_b32 s37, 12")
    a("s_add_u32 s35, s35, 8192")
    a("s_waitcnt lgkmcnt(0)")
    srd(a, 12, 62, WS_USED)
    a.label("K3_ld0")
    def switch():
        a("s_cmp_eq_u32 s36, 22")
        a("s_cbranch_scc0 K3_nosw")
        a("s_mov_b32 s34, s46")
        a("s_mov_b32 s40, 8")
        a("s_mov_b32 s41, %d" % (32 * 1024))
        a("s_lshl_b32 s33, s47, 15")
        a("s_lshl_b32 s32, s29, 16")
        a("s_add_u32 s32, s32, s33")
        a("s_add_u32 s32, s32, 0x%x          ; F: O blocks" % WS_OF)
        a("s_bitcmp1_b32 s24, 0")
        a("s_cbranch_scc1 K3_nosw")
        a("s_mov_b32 s12, s6")
        a("s_and_b32 s13, s7, 0xffff")
        a("s_mov_b32 s14, 0x%x" % (512 * 1024))
        a("v_lshl_add_u32 v4, v16, 10, v17")
        for i in range(1, 4): a("v_add_u32 v%d, %d, v4" % (4 + i, i * (8192 - 1024)))
        a("s_lshl_b32 s32, s30, 7")
        a("s_add_u32 s32, s32, s33")
        a("s_mov_b32 s37, 16")
        a.label("K3_nosw")
    def issue():
        L = ["s_lshl_b32 s38, s34, s37",
             "s_add_u32 s38, s38, s32"]
        for g in range(G):
            L.append("s_add_u32 m0, s35, %d" % (g * 4096))
            L.append("s_add_u32 s38, s38, s41" if g else "s_add_u32 s34, s34, 1")
            for i in range(4): L.append("buffer_load_dwordx4 v%d, s[12:15], s38 offen offset:%d lds" % (4 + i, 1024 * i))
        L += ["s_cmp_lt_u32 s34, s40", "s_cselect_b32 s34, s34, 0", "s_add_u32 s35, s35, 16384", "s_and_b32 s35, s35, 0xffff"]
        return L
    loader_loop(a, "K3", 30, D, 4 * G, issue, switch, kidx=2)
    a("s_branch K3_done")
    a.label("K3_cons")
    a("s_lshr_b32 s41, s24, 1")
    a("s_and_b32 s42, s24, 1")
    a("v_and_b32 v2, 31, v1")
    a("v_lshrrev_b32 v3, 5, v1               ; half")
    a("v_lshlrev_b32 v20, 10, v2")
    a("v_lshl_add_u32 v21, v3, 3, v20")
    a("s_lshl_b32 s31, s29, 1")
    a("s_add_u32 s31, s31, s42               ; sb")
    a("s_lshl_b32 s45, s31, 15")
    a("s_lshl_b32 s32, s30, 7")
    a("s_add_u32 s45, s45, s32")
    a("s_lshl_b32 s32, s41, 6")
    a("s_add_u32 s45, s45, s32")
    a("v_lshlrev_b32 v22, 1, v2")
    a("s_lshl_b32 s32, s31, 6")
    a("s_waitcnt lgkmcnt(0)")
    srd(a, 16, 4, 2048 * 1024)
    srd(a, 64, 10, 4096)
    srd(a, 68, 60, 2048 * 1024)
    for g in range(4): a("buffer_load_dwordx2 %s, v21, s[16:19], s45 offen offset:%d" % (vr(8 + 2 * g, 2), g * 16))
    a("buffer_load_ushort v23, v22, s[64:67], s32 offen")
    tr_base(a, 24, 26)
    a("s_lshl_b32 s43, s42, 6")
    a("v_xor_b32 v18, s43, v24")
    a("s_lshl_b32 s43, s41, 12")
    a("s_add_u32 s43, s43, 8192")
    a("v_lshl_add_u32 v19, v1, 4, s43")
    ACC = 32; SET = [48, 80]
    for i in range(32): a("v_mov_b32 v%d, 0" % (SET[1] + i))
    for i in range(16): a("v_mov_b32 v%d, 0" % (ACC + i))
    a("s_mov_b32 s48, 0")
    def mf(s): return ["v_mfma_f32_32x32x16_bf16 %s, %s, %s, %s" % (vr(ACC, 16), vr(SET[s] + 8 * ks, 4), vr(SET[s] + 8 * ks + 4, 4), vr(ACC, 16)) for ks in range(4)]
    for part, (t0, t1) in enumerate(((0, 22), (22, 30))):
        a.label("K3_loop%d" % part)
        for s in range(2):
            a("s_waitcnt lgkmcnt(0)")
            a("s_barrier")
            R = []
            for ks in range(4):
                A = SET[s] + 8 * ks; B = A + 4
                if part == 0: R += rd_F(A, 19, ks, s * 16384) + rd_T(B, 18, ks, s * 16384)
                else: R += rd_T(A, 18, ks, s * 16384) + rd_F(B, 19, ks, s * 16384)
            if s == 1: R += ["v_xor_b32 v18, 0x8000, v18", "v_xor_b32 v19, 0x8000, v19", "s_add_u32 s48, s48, 2", "s_cmp_lt_u32 s48, %d" % t1]
            interleave(a, mf(1 - s), R)
        a("s_cbranch_scc1 K3_loop%d" % part)
        if part == 0:
            a("s_xor_b32 s43, s41, s42")
            a("s_lshl_b32 s44, s43, 6")
            a("s_lshl_b32 s43, s43, 12")
            a("v_xor_b32 v18, s44, v18")
            a("v_xor_b32 v19, s43, v19")
            a("s_waitcnt vmcnt(0)")
            a("v_lshlrev_b32 v23, 16, v23")
            for g in range(4):
                for i in range(2):
                    a("v_lshlrev_b32 v%d, 16, v%d" % (112 + 4 * g + 2 * i, 8 + 2 * g + i))
                    a("v_and_b32 v%d, 0xffff0000, v%d" % (112 + 4 * g + 2 * i + 1, 8 + 2 * g + i))
            for i in range(16): a("v_add_f32 v%d, v23, v%d" % (112 + i, 112 + i))
    a("s_waitcnt lgkmcnt(0)")
    for x in mf(1): a(x)
    prof_mid(a, 0)
    a("v_lshl_add_u32 v21, v3, 4, v20")
    a("s_nop 10")
    for i in range(16): a("v_add_f32 v%d, v%d, v%d" % (ACC + i, 112 + i, ACC + i))
    for i in range(8): a("v_cvt_pk_bf16_f32 v%d, v%d, v%d" % (48 + i, ACC + 2 * i, ACC + 2 * i + 1))
    a("s_nop 1")
    for p in range(2):
        a("v_permlane32_swap_b32 v%d, v%d" % (48 + 4 * p, 48 + 4 * p + 2))
        a("v_permlane32_swap_b32 v%d, v%d" % (48 + 4 * p + 1, 48 + 4 * p + 3))
    for p in range(2):
        a("buffer_store_dwordx4 %s, v21, s[68:71], s45 offen offset:%d" % (vr(48 + 4 * p, 4), p * 32))
    a.label("K3_done")
    prof_end(a, 2, 24, 4 + Cfg.l3)
    a("s_waitcnt vmcnt(0)")
    a.label("K3_end")
    a("s_endpgm")
    return kernel_desc("k3_kernel", 128), 65536

def build(path, prof=False):
    Cfg.prof = prof
    a = Asm()
    d1, l1 = k1(a); d2, l2 = k2(a); d3, l3 = k3(a)
    ref = open("cdna_kernels/%s.s.ref" % KN).read().split("\n")
    hdr = [l for l in ref[:12] if l.startswith(";")]
    names = ["k1_kernel", "k2_kernel", "k3_kernel"]
    if Cfg.unified:
        names = ["k1_kernel"] * 3
        l3 = 81920
        d2 = d3 = ""
        out = []
        for l in a.lines:
            if any(l == x % n for n in ("k2_kernel", "k3_kernel") for x in (".globl %s", ".type %s,@function")): continue
            out.append(l)
            if l == "k1_kernel:":
                out += ["    ; one entry for the three launches: the LDS allocation tells them apart",
                        "    s_getreg_b32 s3, hwreg(HW_REG_LDS_ALLOC, 12, 10)",
                        "    s_cmp_eq_u32 s3, 0x104", "    s_cbranch_scc1 k2_kernel",
                        "    s_cmp_eq_u32 s3, 0x140", "    s_cbranch_scc1 k3_kernel"]
        a.lines = out
    hdr.append("; @launch kernel=%s grid=(256,1,1) block=(384,1,1) lds=%d" % (names[0], l1))
    hdr.append("; @launch kernel=%s grid=(512,1,1) block=(320,1,1) lds=%d" % (names[1], l2))
    hdr.append("; @launch kernel=%s grid=(256,1,1) block=(%d,1,1) lds=%d" % (names[2], 256 + 64 * Cfg.l3, l3))
    hdr.append('.amdgcn_target "amdgcn-amd-amdhsa--gfx950"')
    a.label('K_code_end')
    body = a.text().replace('@ST@', Cfg.st)
    errs = hazard.check(body)
    for e in errs: print(e)
    open(path, "w").write("\n".join(hdr) + "\n" + body + d1 + d2 + d3)
    import subprocess
    r = subprocess.run(["clang", "-x", "assembler", "-target", "amdgcn-amd-amdhsa", "-mcpu=gfx950", "-c", path, "-o", "chk.o"], capture_output=True, text=True)
    if r.returncode: print(r.stderr[:2000]); raise SystemExit(1)
    return len(errs)

if __name__ == "__main__":
    n = build("cdna_kernels/%s.s" % KN)
    build("prof.s", prof=True)
    print("hazards:", n)
```
